```python
import torch

def _softmax(x, axis=-1):
    return torch.softmax(x, dim=axis)
def _gelu(x):
    return torch.nn.functional.gelu(x, approximate="tanh")
def _silu(x):
    return torch.nn.functional.silu(x)
def _sigmoid(x):
    return torch.sigmoid(x)
def _layernorm(x, axis=-1, eps=1e-5):
    m = x.mean(dim=axis, keepdim=True)
    v = x.var(dim=axis, keepdim=True, unbiased=False)
    return (x - m) / torch.sqrt(v + eps)
def _scatter_add(tgt, idx, src, axis=0):
    return tgt.clone().index_add_(axis, idx, src)
def _segment_sum(src, seg, n):
    out = torch.zeros((n,) + src.shape[1:], dtype=src.dtype)
    return out.index_add_(0, seg, src)
def _pad(x, pw):
    flat = tuple(v for pair in reversed(pw) for v in pair)
    return torch.nn.functional.pad(x, flat)

kernel_name = 'gated_mix__mha_block__glu_gated_glu__prompt'

def setup_inputs():

    _w = (lambda a: (lambda t: t.to(torch.bfloat16) if t.is_floating_point() else t)(torch.as_tensor(a)))
    def _A_setup():
        B, S, D, H = 1, 2048, 512, 32
        return {
            "x": _w((lambda *s: torch.randn(*s, dtype=torch.bfloat16) * 0.05)(B, S, D)),
            "wqkv": _w((lambda *s: torch.randn(*s, dtype=torch.bfloat16) * 0.8)(D, 3 * D)),
            "wo": _w((lambda *s: torch.randn(*s, dtype=torch.bfloat16) * 0.1)(D, D)),
        }
    _A_in = _A_setup()

    def _B_setup():
        B, S, D, F = 1, 2048, 512, 1792
        return {
            "x": _w((lambda *s: torch.randn(*s, dtype=torch.bfloat16) * 0.05)(B, S, D)),
            "w_gate": _w((lambda *s: torch.randn(*s, dtype=torch.bfloat16) * 0.4)(D, F)),
            "w_up": _w((lambda *s: torch.randn(*s, dtype=torch.bfloat16) * 0.05)(D, F)),
            "w_down": _w((lambda *s: torch.randn(*s, dtype=torch.bfloat16) * 0.05)(F, D)),
        }
    _B_in = _B_setup()

    return {
        "A_x": _A_in["x"],
        "A_wqkv": _A_in["wqkv"],
        "A_wo": _A_in["wo"],
        "B_x": _B_in["x"],
        "B_w_gate": _B_in["w_gate"],
        "B_w_up": _B_in["w_up"],
        "B_w_down": _B_in["w_down"],
        "gate_w": _w((lambda *s: torch.randn(*s, dtype=torch.bfloat16) * 0.05)(512) * 16.0),
    }

def reference(A_x, A_wqkv, A_wo, B_x, B_w_gate, B_w_up, B_w_down, gate_w):
    def _A_ref(x, wqkv, wo):
        B, S, D = x.shape
        H = 32
        Dh = D // H
        qkv = (lambda x, *d: x.permute(*d))((x @ wqkv).reshape(B, S, 3, H, Dh), 2, 0, 3, 1, 4)
        q, k, v = qkv[0], qkv[1], qkv[2]
        scores = torch.einsum("bhqd,bhkd->bhqk", q, k) * (Dh ** -0.5)
        p = _softmax(scores, axis=-1)
        o = torch.einsum("bhqk,bhkd->bhqd", p, v)
        return (lambda x, *d: x.permute(*d))(o, 0, 2, 1, 3).reshape(B, S, D) @ wo

    def _B_ref(x, w_gate, w_up, w_down):
        g = torch.einsum("bsd,df->bsf", x, w_gate)
        u = torch.einsum("bsd,df->bsf", x, w_up)
        h = _sigmoid(g) * u
        return torch.einsum("bsf,fd->bsd", h, w_down)

    x = A_x
    g = _sigmoid((x * gate_w).sum(-1, keepdims=True))
    a = _A_ref(x, A_wqkv, A_wo)
    b = _B_ref(x, B_w_gate, B_w_up, B_w_down)
    return g * a + (1 - g) * b
```

```python
import re

TRANS = ("v_exp_f32","v_rcp_f32","v_log_f32","v_rsq_f32","v_sqrt_f32")

def regs_of(tok):
    tok = tok.strip()
    tok = tok.lstrip("-")
    if tok.startswith("abs(") : tok = tok[4:-1]
    if tok.startswith("|"): tok = tok.strip("|")
    m = re.fullmatch(r"([vas])(\d+)", tok)
    if m: return [(m.group(1), int(m.group(2)))]
    m = re.fullmatch(r"([vas])\[(\d+):(\d+)\]", tok)
    if m: return [(m.group(1), i) for i in range(int(m.group(2)), int(m.group(3))+1)]
    if tok == "vcc": return [("s","vcc")]
    if tok in ("vcc_lo","vcc_hi"): return [("s","vcc")]
    if tok == "m0": return [("s","m0")]
    if tok in ("exec","exec_lo","exec_hi"): return [("s","exec")]
    return []

class Ins:
    def __init__(s, text):
        s.text = text
        t = text.split(";")[0].strip()
        s.label = t.endswith(":")
        s.directive = t.startswith(".")
        s.op = t.split()[0] if t else ""
        rest = t[len(s.op):].strip()
        ops = [x.strip() for x in rest.split(",")] if rest else []
        mods = ""
        if ops:
            parts = ops[-1].split()
            ops[-1] = parts[0]; mods = " ".join(parts[1:])
        s.ops = ops; s.mods = mods
        s.w = []; s.r = []; s.c = []
        op = s.op
        s.kind = "other"
        s.states = 1
        if s.label or s.directive or not op:
            s.kind = "none"; s.states = 0; return
        if op == "s_nop":
            s.kind = "nop"; s.states = int(ops[0]) + 1; return
        if op.startswith("v_mfma"):
            s.kind = "mfma"
            s.passes = 2 if "4x4x4" in op else (8 if "32x32x16" in op else 4)
            s.w = regs_of(ops[0]); s.r = regs_of(ops[1]) + regs_of(ops[2]); s.c = regs_of(ops[3])
        elif op.startswith("v_"):
            s.kind = "valu"
            s.trans = op.replace("_e32","").replace("_e64","") in TRANS
            if op.startswith("v_permlane") and "swap" in op:
                s.w = regs_of(ops[0]) + regs_of(ops[1]); s.r = list(s.w)
            else:
                s.w = regs_of(ops[0])
                for o in ops[1:]: s.r += regs_of(o)
                if op.startswith("v_fmac") : s.r += regs_of(ops[0])
        elif op.startswith("ds_"):
            s.kind = "ds"
            if op.startswith("ds_read"):
                s.w = regs_of(ops[0]); s.r = regs_of(ops[1])
            else:
                for o in ops: s.r += regs_of(o)
                s.data = regs_of(ops[1]) if op.endswith("b128") else []
        elif op.startswith("buffer_") or op.startswith("global_"):
            s.kind = "vmem"
            s.dma = " lds" in (" " + mods)
            s.data = []
            if op.startswith("buffer_load") and not s.dma:
                s.w = regs_of(ops[0])
                for o in ops[1:]: s.r += regs_of(o)
            elif op.startswith("global_load") and not s.dma:
                s.w = regs_of(ops[0])
                for o in ops[1:]: s.r += regs_of(o)
            else:
                for o in ops: s.r += regs_of(o)
                if s.dma: s.r += [("s","m0")]
                if op == "buffer_store_dwordx4": s.data = regs_of(ops[0])
        elif op.startswith("s_"):
            s.kind = "salu"
            if op.startswith(("s_cmp","s_bitcmp","s_cbranch","s_branch","s_waitcnt","s_barrier","s_setprio","s_endpgm")):
                for o in ops: s.r += regs_of(o)
            else:
                if ops: s.w = regs_of(ops[0])
                for o in ops[1:]: s.r += regs_of(o)

def need_states(p, c):
    n = 0
    pw = set(p.w); cr = set(c.r); cw = set(c.w); cc = set(c.c)
    vw = {x for x in pw if x[0] in "va"}
    sw = {x for x in pw if x[0] == "s"}
    if p.kind == "valu":
        if c.kind == "mfma" and vw & (cr | cc): n = max(n, 2)
        if c.kind == "valu":
            if p.trans and vw & cr: n = max(n, 1)
            if c.op.startswith(("v_readfirstlane","v_readlane")) and vw & cr: n = max(n, 1)
            if c.op.startswith("v_permlane") and vw & cr: n = max(n, 2)
            if "dpp" in c.text and vw & cr: n = max(n, 2)
            if sw & cr: n = max(n, 2)
        if c.kind == "vmem" and sw & cr: n = max(n, 5)
        if c.kind == "salu" and sw & cr: n = max(n, 1)
        if p.trans and c.kind in ("ds","vmem") and vw & cr: n = max(n, 1)
    if p.kind == "mfma":
        big = {2:5, 4:8, 8:12}[p.passes]
        if c.kind in ("valu","ds","vmem") and vw & (cr | cw): n = max(n, big)
        if c.kind == "mfma":
            if vw & cr: n = max(n, big)
            if vw & cc:
                if cc == vw and c.passes == p.passes: n = max(n, 2 if p.passes == 2 else 0)
                else: n = max(n, {2:4, 4:6, 8:10}[p.passes])
            elif vw & cw and c.passes != p.passes: n = max(n, big)
        if c.kind == "valu" and set(p.c) & cw: n = max(n, {2:1, 4:3, 8:7}[p.passes])
    if p.kind == "salu" and ("s","m0") in pw and c.kind == "vmem" and c.dma: n = max(n, 1)
    if p.kind in ("vmem","ds") and getattr(p, "data", None):
        if set(p.data) & cw: n = max(n, 2)
    return n

class K:
    def __init__(s):
        s.ins = []
        s.lq = []
        s.vq = []
        s.have = set()
        s.nops = 0
        s.ool = []
        s.verify = True
        s.nl = 0
    def label(s, base):
        s.nl += 1
        return f"L_{base}_{s.nl}"
    def raw(s, text):
        s.ins.append(Ins(text))
    def e(s, text):
        for line in text.split("\n"):
            line = line.strip()
            if not line: continue
            s._emit(Ins(line))
    def _emit(s, c):
        if c.kind not in ("none","nop"):
            dist = 0; need = 0
            for p in reversed(s.ins):
                if dist >= 13: break
                if p.kind not in ("none","nop"):
                    k = need_states(p, c)
                    if k - dist > need: need = k - dist
                dist += p.states
            if need > 0:
                s.ins.append(Ins(f"s_nop {need-1}")); s.nops += need
            if s.verify:
                touched = set(c.r) | set(c.w) | set(c.c)
                for q, nm in ((s.lq,"lgkm"),(s.vq,"vm")):
                    for tag, regs in q:
                        if touched & regs:
                            raise Exception(f"pending {nm} load {tag} touches regs of: {c.text}")
        s.ins.append(c)
    def lds(s, tag, text):
        c = Ins(text); s._emit(c); s.lq.append((tag, set(c.w)))
    def vm(s, tag, text):
        c = Ins(text); s._emit(c); s.vq.append((tag, set(c.w)))
    def _need(s, q, tags):
        idx = [i for i,(t,_) in enumerate(q) if t in tags]
        if not idx: return None
        last = max(idx)
        return len(q) - 1 - last
    def wait(s, lds=(), vm=()):
        parts = []
        n = s._need(s.vq, vm)
        if n is not None:
            n = min(n, 63)
            parts.append(f"vmcnt({n})"); s.vq = s.vq[len(s.vq)-n:] if n else []
        n = s._need(s.lq, lds)
        if n is not None:
            n = min(n, 15)
            parts.append(f"lgkmcnt({n})"); s.lq = s.lq[len(s.lq)-n:] if n else []
        if parts: s.e("s_waitcnt " + " ".join(parts))
    def wait_all(s, lds=True, vm=True):
        parts = []
        if vm: parts.append("vmcnt(0)"); s.vq = []
        if lds: parts.append("lgkmcnt(0)"); s.lq = []
        s.e("s_waitcnt " + " ".join(parts))
    def provide(s, *tags): s.have.update(tags)
    def require(s, *tags):
        for t in tags:
            if t not in s.have: raise Exception(f"order violation: {t} not provided yet")
    def text(s):
        out = []
        for i in s.ins:
            out.append(i.text if (i.label or i.directive) else "    " + i.text)
        return "\n".join(out)

def vr(b, n=1, p="v"):
    return f"{p}{b}" if n == 1 else f"{p}[{b}:{b+n-1}]"
def ar(b, n=1): return vr(b, n, "a")
def sr(b, n=1): return vr(b, n, "s")
```

```python
import sys, math, struct
from asmlib import *

NAME = "gated_mix__mha_block__glu_gated_glu__prompt"
LOG2E = 1.4426950408889634
def f2u(x): return struct.unpack("<I", struct.pack("<f", x))[0]

KVT = 2064; KVS = 8*KVT
GW_L = 49664; PROG = 50688; RA = 51200; WV = 12288
LDS_BYTES = RA + 8*WV
WS_F = 0; WS_KV = 0x10000; WS_HO = 0x500000; HO_M = 144*1024; WS_ST = 0x1000000; WS_SZ = 0x2000000
AK,AV0,AV1,AWA,AWB,VC,VG,PW,PR,T0,T1,VWG,VFL,VD0,VD1 = range(1,16)
Q=16; KF=20; VF=24; SA=32; SB=48; O=64; GA=80; GB=96; WB=112
sX,sWQ,sWO,sWG,sWU,sWD,sGW,sOUT,sDBG,sWS,sWSH,sDBL = range(28,76,4)
sW,sH,sR,sROT,sMT,sNT,sWB,sXO,sWQO,sKVO,sKVH,sFO,sFK,sHOS,sHOL,sWGO,sWDO,sWOO,sDONE,sT,sT2,sCNT = range(76,98)
sST = 4

DEF = dict(stamps=False, mapping="C", gu_tiles=36, hd=2, spin=1<<20,
           prio={0:3,3:2,6:1,7:0}, force_fb=False)

def gen(cfg):
    c = dict(DEF); c.update(cfg)
    k = K(); e = k.e
    nst = [0]
    locks = set()
    def lock(x):
        assert x not in locks, x
        locks.add(x)
    def unlock(x): locks.remove(x)
    def stamp():
        if not c["stamps"]: return
        i = nst[0]; nst[0] += 1
        assert i < 16
        e("s_memtime s[26:27]"); k.wait_all(lds=True, vm=False)
        e(f"s_mov_b32 s{sST+i}, s26")
    def srd(s, p, n, gate=None):
        e(f"s_mov_b32 s{s}, s{p}"); e(f"s_and_b32 s{s+1}, s{p+1}, 0xffff")
        if gate is None: e(f"s_mov_b32 s{s+2}, {n}")
        else: e(f"s_cselect_b32 s{s+2}, {n}, 0")
        e(f"s_mov_b32 s{s+3}, 0x20000")
    def dma(tag, voff, rs, soff, ldsbase, ldsoff, sc1=False):
        if ldsbase is None: e(f"s_mov_b32 m0, {ldsoff}")
        else: e(f"s_add_u32 m0, s{ldsbase}, {ldsoff}")
        so = soffs(soff)
        k.vm(tag, f"buffer_load_dwordx4 v{voff}, {sr(rs,4)}, {so} offen {'sc1 ' if sc1 else ''}lds")
    def soffs(soff):
        s, imm = soff
        if imm == 0: return f"s{s}"
        e(f"s_add_u32 s{sT}, s{s}, {imm}")
        return f"s{sT}"

    e("s_cmp_ge_u32 s2, 256"); e("s_cbranch_scc1 L_end")
    e("s_load_dwordx16 s[4:19], s[0:1], 0")
    e("s_load_dwordx4 s[20:23], s[0:1], 64")
    e("s_load_dwordx2 s[24:25], s[0:1], 80")
    if c["stamps"]:
        e("s_memrealtime s[98:99]"); e("s_memtime s[100:101]")
    e(f"v_lshrrev_b32 v{T0}, 6, v0")
    e(f"v_and_b32 v0, 63, v0")
    e(f"v_readfirstlane_b32 s{sW}, v{T0}")
    e(f"s_and_b32 s{sT}, s2, 7"); e(f"s_lshr_b32 s{sT2}, s2, 3")
    if c["mapping"] == "C":
        e(f"s_and_b32 s{sR}, s{sT}, 1"); e(f"s_lshl_b32 s{sR}, s{sR}, 2"); e(f"s_lshr_b32 s3, s{sT2}, 3"); e(f"s_add_u32 s{sR}, s{sR}, s3")
        e(f"s_lshr_b32 s{sH}, s{sT}, 1"); e(f"s_lshl_b32 s{sH}, s{sH}, 3"); e(f"s_and_b32 s3, s{sT2}, 7"); e(f"s_add_u32 s{sH}, s{sH}, s3")
        e(f"s_and_b32 s{sROT}, s{sH}, 7")
    elif c["mapping"] == "A":
        e(f"s_mov_b32 s{sR}, s{sT}"); e(f"s_mov_b32 s{sH}, s{sT2}"); e(f"s_and_b32 s{sROT}, s{sH}, 7")
    elif c["mapping"] == "B":
        e(f"s_lshr_b32 s{sR}, s{sT2}, 2"); e(f"s_lshl_b32 s{sH}, s{sT}, 2"); e(f"s_and_b32 s3, s{sT2}, 3"); e(f"s_add_u32 s{sH}, s{sH}, s3")
        e(f"s_lshl_b32 s{sROT}, s3, 1")
    e(f"s_lshl_b32 s{sMT}, s{sT}, 2"); e(f"s_lshr_b32 s3, s{sT2}, 3"); e(f"s_add_u32 s{sMT}, s{sMT}, s3")
    e(f"s_and_b32 s{sNT}, s{sT2}, 7")
    X0=64; XR=68; T0R=72; T1R=73; GWR=74; T0D=75; T1D=76; GWD=77; U0=78; U1=79
    ln = 0
    e(f"v_lshlrev_b32 v{AK}, 4, v0")
    e(f"v_lshrrev_b32 v{U0}, 2, v0"); e(f"v_mul_u32_u24 v{T0D}, 3072, v{U0}")
    e(f"v_mul_u32_u24 v{VWG}, 3584, v{U0}")
    e(f"v_and_b32 v{U0}, 3, v0"); e(f"v_lshl_add_u32 v{VWG}, v{U0}, 4, v{VWG}")
    e(f"v_and_b32 v{U0}, 2, v0"); e(f"v_lshl_add_u32 v{T0D}, v{U0}, 9, v{T0D}")
    e(f"v_and_b32 v{U1}, 1, v0"); e(f"v_lshl_add_u32 v{T0D}, v{U1}, 4, v{T0D}")
    e(f"v_lshrrev_b32 v{U0}, 1, v0"); e(f"v_mul_u32_u24 v{T1D}, 3072, v{U0}"); e(f"v_lshl_add_u32 v{T1D}, v{U1}, 4, v{T1D}")
    e(f"v_lshrrev_b32 v{U0}, 4, v0"); e(f"v_and_b32 v{U1}, 7, v0"); e(f"v_xor_b32 v{U0}, v{U0}, v{U1}")
    e(f"v_lshlrev_b32 v{U0}, 4, v{U0}"); e(f"v_lshrrev_b32 v{U1}, 3, v0"); e(f"v_lshl_add_u32 v{X0}, v{U1}, 10, v{U0}")
    e(f"v_xor_b32 v{X0+1}, 64, v{X0}"); e(f"v_add_u32 v{X0+1}, 8192, v{X0+1}")
    e(f"v_add_u32 v{X0+2}, 16384, v{X0}"); e(f"v_add_u32 v{X0+3}, 16384, v{X0+1}")
    e(f"s_mul_i32 s{sWB}, s{sW}, {WV}"); e(f"s_add_u32 s{sWB}, s{sWB}, {RA}")
    e(f"s_lshl_b32 s{sT}, s{sR}, 3"); e(f"s_add_u32 s{sT}, s{sT}, s{sW}")
    e(f"s_lshl_b32 s{sXO}, s{sT}, 15")
    e(f"s_lshl_b32 s{sFO}, s{sT}, 7"); e(f"s_lshl_b32 s3, s{sH}, 2"); e(f"s_add_u32 s{sFO}, s{sFO}, s3")
    e(f"s_lshl_b32 s{sFK}, s{sW}, 7"); e(f"s_add_u32 s{sFK}, s{sFK}, s3")
    e(f"s_mul_i32 s{sHOS}, s{sT}, {HO_M}"); e(f"s_add_u32 s{sHOS}, s{sHOS}, {WS_HO}")
    e(f"s_lshl_b32 s{sKVH}, s{sH}, 17"); e(f"s_add_u32 s{sKVH}, s{sKVH}, {WS_KV}")
    e(f"s_lshl_b32 s{sKVO}, s{sT}, 11"); e(f"s_add_u32 s{sKVO}, s{sKVO}, s{sKVH}")
    e(f"s_lshl_b32 s3, s{sROT}, 7")
    e(f"v_add_u32 v{GWD}, s3, v{AK}"); e(f"v_and_b32 v{GWD}, 1023, v{GWD}")
    e("s_waitcnt lgkmcnt(0)")
    srd(sWQ, 6, 512*1536*2); srd(sX, 4, 2048*512*2); srd(sGW, 18, 1024); srd(sWS, 24, WS_SZ)
    e(f"s_or_b32 s3, s2, s{sW}"); e("s_cmp_eq_u32 s3, 0")
    srd_after = True
    e(f"s_cselect_b32 s{sDBL+2}, 256, 0")
    e("s_cbranch_scc0 L_nolead")
    for i in range(4): e(f"v_mov_b32 v{WB+i}, 0")
    e(f"s_mov_b32 s3, 4096")
    for i in range(8):
        e(f"buffer_store_dwordx4 {vr(WB,4)}, v{AK}, {sr(sWS,4)}, {'0' if i<4 else 's3'} offen offset:{1024*(i%4)} sc1")
    e("s_nop 1")
    k.raw("L_nolead:")
    def wq_dma(g):
        e(f"s_lshl_b32 s3, s{sROT}, 2"); e(f"s_add_u32 s3, s3, s{sW}"); e(f"s_add_u32 s3, s3, {8*g}"); e("s_and_b32 s3, s3, 31")
        e(f"s_mul_i32 s3, s3, {16*3072}"); e(f"s_lshl_b32 s{sT2}, s{sH}, 5"); e(f"s_add_u32 s{sWQO}, s3, s{sT2}")
        e(f"s_lshl_b32 s{sT2}, s{sW}, 10")
        dma(("wq",g), T0D, sWQ, (sWQO,0), sT2, 12288*g)
        e(f"s_lshl_b32 s{sT2}, s{sW}, 9")
        e("s_mov_b32 exec_hi, 0")
        dma(("wq",g), T1D, sWQ, (sWQO,2048), sT2, 12288*g+8192)
        e("s_mov_b32 exec_hi, -1")
    def x_dma(j):
        e(f"s_add_u32 s3, s{sROT}, {j}"); e("s_and_b32 s3, s3, 7"); e("s_lshl_b32 s3, s3, 7"); e(f"s_add_u32 s{sT2}, s3, s{sXO}")
        for i in range(4): dma(("x",j), X0+i, sX, (sT2,0), sWB, (j%3)*4096+i*1024)
    wq_dma(0)
    e(f"s_mov_b32 s3, 0")
    dma(("wq",0), GWD, sGW, (3,0), None, GW_L)
    x_dma(0); x_dma(1); wq_dma(1); x_dma(2)
    e(f"s_mov_b32 s{sDBL}, s22"); e(f"s_and_b32 s{sDBL+1}, s23, 0xffff"); e(f"s_mov_b32 s{sDBL+3}, 0x20000")
    srd(sDBG, 22, 256); srd(sOUT, 20, 2048*512*2); srd(sWO, 8, 512*512*2); srd(sWD, 16, 1792*512*2)
    for s_, p_, n_ in ((sWG,12,512*1792*2),(sWU,14,512*1792*2),(sWSH,24,WS_SZ)):
        e(f"s_mov_b32 s{s_}, s{p_}"); e(f"s_and_b32 s{s_+1}, s{p_+1}, 0xffff"); e(f"s_mov_b32 s{s_+3}, 0x20000")
        e(f"s_cmp_lt_u32 s{sH}, 28"); e(f"s_cselect_b32 s{s_+2}, {n_}, 0")
    e(f"s_add_u32 s3, s{sW}, s{sROT}"); e("s_and_b32 s3, s3, 7"); e(f"s_mul_i32 s3, s3, {64*3584}")
    e(f"s_lshl_b32 s{sWGO}, s{sH}, 7"); e(f"s_add_u32 s{sWGO}, s{sWGO}, s3")
    e(f"s_lshr_b32 s3, s{sW}, 1"); e("s_lshl_b32 s3, s3, 2"); e(f"s_and_b32 s{sT}, s{sW}, 1"); e(f"s_add_u32 s3, s3, s{sT}")
    e(f"s_lshl_b32 s{sWDO}, s3, 14"); e(f"s_lshl_b32 s{sT}, s{sNT}, 7"); e(f"s_add_u32 s{sWDO}, s{sWDO}, s{sT}")
    e(f"s_lshl_b32 s{sWOO}, s{sW}, 14"); e(f"s_add_u32 s{sWOO}, s{sWOO}, s{sT}")
    e(f"s_mul_i32 s{sHOL}, s{sMT}, {2*HO_M}"); e(f"s_add_u32 s{sHOL}, s{sHOL}, {WS_HO}"); e("s_lshl_b32 s3, s3, 10"); e(f"s_add_u32 s{sHOL}, s{sHOL}, s3")
    e(f"s_lshl_b32 s{sDONE}, 1, s{sR}")
    e(f"v_and_b32 v{U0}, 31, v0"); e(f"v_lshlrev_b32 v{T0}, 7, v{U0}"); e(f"v_add_u32 v{T0}, s{sWB}, v{T0}")
    e(f"v_bfe_u32 v{U0}, v0, 1, 3"); e(f"v_lshrrev_b32 v{U1}, 5, v0"); e(f"v_xor_b32 v{U0}, v{U0}, v{U1}")
    for s_ in range(4):
        e(f"v_xor_b32 v{T1}, {2*s_}, v{U0}"); e(f"v_lshl_add_u32 v{XR+s_}, v{T1}, 4, v{T0}")
    e(f"v_bfe_u32 v{U0}, v0, 2, 2"); e(f"v_lshl_add_u32 v{U0}, v{U1}, 3, v{U0}")
    e(f"v_and_b32 v{T0}, 3, v0"); e(f"v_lshlrev_b32 v{T0}, 3, v{T0}")
    e(f"v_lshl_add_u32 v{T1R}, v{U0}, 5, v{T0}")
    e(f"v_lshl_add_u32 v{T0R}, v{U0}, 6, v{T0}"); e(f"v_and_b32 v{T1}, 16, v0"); e(f"v_lshl_add_u32 v{T0R}, v{T1}, 1, v{T0R}")
    e(f"v_lshlrev_b32 v{GWR}, 4, v{U1}"); e(f"v_add_u32 v{GWR}, {GW_L}, v{GWR}")
    e(f"v_add_u32 v{VD0}, s{sWB}, v{T0R}")
    e(f"v_add_u32 v{VD1}, s{sWB}, v{AK}")
    e(f"v_add_u32 v{AWA}, {RA}, v{AK}"); e(f"v_add_u32 v{AWB}, {RA+4*WV}, v{AK}")
    e(f"v_and_b32 v{T0}, 15, v0"); e(f"v_lshl_add_u32 v{T0}, v{U1}, 5, v{T0}"); e(f"v_lshlrev_b32 v{T0}, 4, v{T0}")
    e(f"v_add_u32 v{AV0}, 1024, v{T0}")
    e("s_mov_b32 exec_lo, 0x0ff00000"); e("s_mov_b32 exec_hi, 0x0ff00000")
    e(f"v_lshlrev_b32 v{T0}, 9, v{U1}"); e(f"v_add_u32 v{AV0}, 1024, v{T0}")
    e("s_mov_b64 exec, -1")
    e(f"v_add_u32 v{AV1}, 256, v{AV0}")
    e("s_mov_b32 exec_lo, 0xf00f0000"); e("s_mov_b32 exec_hi, 0xf00f0000")
    e(f"v_mov_b32 v{AV0}, 2048"); e(f"v_mov_b32 v{AV1}, 2048")
    e("s_mov_b64 exec, -1")
    e(f"s_lshl_b32 s3, s{sW}, 2"); e(f"s_add_u32 s3, s3, {PROG}"); e(f"v_mov_b32 v{PW}, s3")
    e(f"v_and_b32 v{T0}, 7, v0"); e(f"v_lshlrev_b32 v{VFL}, 10, v{T0}"); e(f"v_lshlrev_b32 v{PR}, 2, v{T0}"); e(f"v_add_u32 v{PR}, {PROG}, v{PR}")
    e(f"v_lshlrev_b32 v{T0}, 3, v0"); e(f"v_mov_b32 v{WB}, 0"); e(f"v_mov_b32 v{WB+1}, 0")
    k.lds("z", f"ds_write_b64 v{T0}, {vr(WB,2)} offset:{PROG}")
    stamp()

    def w_dma(name, slot):
        rs = sWG if name[0]=="G" else sWU
        for x in range(4):
            dma(("W",name), VWG, rs, (sWGO, int(name[1])*64 + x*16*3584), sWB, slot*4096 + x*1024)
    WSLOT = dict(G0=2,U0=0,G1=1,U1=2)
    FS = lambda s_: 32 + 12*(s_%2); Z=56
    def qkv_reads(s_):
        g = s_//8; b = FS(s_); o0 = 12288*g + 1024*(s_%8); o1 = 12288*g + 8192 + 512*(s_%8)
        k.lds(("f",s_), f"ds_read_b64_tr_b16 {vr(b,2)}, v{T0R} offset:{o0}")
        k.lds(("f",s_), f"ds_read_b64_tr_b16 {vr(b+2,2)}, v{T0R} offset:{o0+256}")
        k.lds(("f",s_), f"ds_read_b64_tr_b16 {vr(b+4,2)}, v{T1R} offset:{o1}")
        k.lds(("f",s_), f"ds_read_b64_tr_b16 {vr(b+6,2)}, v{T1R} offset:{o1+128}")
        k.lds(("f",s_), f"ds_read_b128 {vr(b+8,4)}, v{GWR} offset:{32*s_}")
    for j in range(8):
        k.wait(vm=[("x",j)])
        for s_ in range(4):
            k.lds(("xr",j), f"ds_read_b128 {ar(16*j+4*s_,4)}, v{XR+s_} offset:{(j%3)*4096}")
        if j == 0:
            e(f"v_mov_b32 v{T0}, 1")
            k.vm("dbgst", f"buffer_store_dword v{T0}, off, {sr(sDBL,4)}, 0 sc1")
        k.wait(lds=[("xr",j)])
        if j+3 < 8: x_dma(j+3)
        if j == 0: wq_dma(2)
        if j == 2: wq_dma(3)
        if j == 5:
            w_dma("G0", 2)
            k.vm("dbgld", f"buffer_load_dword v{T1}, off, {sr(sDBG,4)}, 0 sc1")
        if j % 2 == 0:
            e("s_barrier"); qkv_reads(4*j)
        for s_ in range(4*j, 4*j+4):
            if (s_+1) % 8: qkv_reads(s_+1)
            k.wait(lds=[("f",s_)])
            b = FS(s_); xa = 4*s_
            z0 = "0" if s_ == 0 else None
            e(f"v_mfma_f32_32x32x16_bf16 {vr(GA,16)}, {vr(b,4)}, {ar(xa,4)}, {z0 or vr(GA,16)}")
            e(f"v_mfma_f32_4x4x4_16b_bf16 {vr(Z,4)}, {vr(b+8,2)}, {ar(xa,2)}, {z0 or vr(Z,4)}")
            e(f"v_mfma_f32_32x32x16_bf16 {vr(GB,16)}, {ar(xa,4)}, {vr(b+4,4)}, {z0 or vr(GB,16)}")
            e(f"v_mfma_f32_4x4x4_16b_bf16 {vr(Z+4,4)}, {vr(b+10,2)}, {ar(xa+2,2)}, {z0 or vr(Z+4,4)}")
    stamp()
    KT=112; VT=116; ON=120
    e(f"s_mul_i32 s3, s{sW}, {KVT}"); e(f"v_add_u32 v{U0}, s3, v{AK}"); e(f"v_mov_b32 v{U1}, s3")
    for i in range(4): e(f"v_mov_b32 v{ON+i}, 0x3f803f80")
    for i in range(4): e(f"v_cvt_pk_bf16_f32 v{KT+i}, v{GA+8+2*i}, v{GA+9+2*i}")
    k.vm("kv", f"buffer_store_dwordx4 {vr(KT,4)}, v{AK}, {sr(sWS,4)}, s{sKVO} offen sc1")
    for i in range(4): e(f"v_cvt_pk_bf16_f32 v{VT+i}, v{GB+2*i}, v{GB+1+2*i}")
    e("s_mov_b32 exec_lo, 0xffff0000"); e("s_mov_b32 exec_hi, 0xffff0000")
    for i in range(4): e(f"v_cvt_pk_bf16_f32 v{VT+i}, v{GB+8+2*i}, v{GB+9+2*i}")
    e("s_mov_b64 exec, -1")
    k.vm("kv", f"buffer_store_dwordx4 {vr(VT,4)}, v{AK}, {sr(sWS,4)}, s{sKVO} offen offset:1024 sc1")
    k.lds("kvw", f"ds_write_b128 v{U0}, {vr(KT,4)}")
    k.lds("kvw", f"ds_write_b128 v{U0}, {vr(VT,4)} offset:1024")
    e("s_mov_b64 exec, 1"); k.lds("kvw", f"ds_write_b128 v{U1}, {vr(ON,4)} offset:2048"); e("s_mov_b64 exec, -1")
    w_dma("U0", 0)
    e(f"s_mov_b32 s3, {f2u(0.25*LOG2E)}")
    for i in range(8): e(f"v_mul_f32 v{GA+i}, s3, v{GA+i}")
    for i in range(4): e(f"v_cvt_pk_bf16_f32 v{Q+i}, v{GA+2*i}, v{GA+1+2*i}")
    e(f"v_add_f32 v{Z}, v{Z}, v{Z+4}"); e(f"v_mov_b32 v{Z+1}, v{Z}")
    e(f"v_permlane32_swap_b32 v{Z}, v{Z+1}")
    e(f"v_add_f32 v{Z}, v{Z}, v{Z+1}"); e(f"v_mul_f32 v{Z}, {hex(f2u(LOG2E))}, v{Z}")
    e(f"v_exp_f32 v{VC}, v{Z}"); e(f"v_exp_f32 v{VG}, -v{Z}")
    e(f"v_add_f32 v{VC}, 1.0, v{VC}"); e(f"v_add_f32 v{VG}, 1.0, v{VG}")
    e(f"v_min_f32 v{VC}, {hex(f2u(2.0**100))}, v{VC}"); e(f"v_rcp_f32 v{VG}, v{VG}")
    def transpose_ops(name):
        slot = WSLOT[name]; ops = []
        def rd(x):
            def f():
                if x == 0: k.wait(vm=[("W",name)]); k.require("GBfree")
                o = slot*4096 + x*1024
                k.lds(("tr",name,x), f"ds_read_b64_tr_b16 {vr(GB+4*x,2)}, v{VD0} offset:{o}")
                k.lds(("tr",name,x), f"ds_read_b64_tr_b16 {vr(GB+4*x+2,2)}, v{VD0} offset:{o+256}")
            return f
        def wr(x):
            def f():
                k.require("GBfree")
                k.wait(lds=[("tr",name,x)])
                k.lds(("tw",name), f"ds_write_b128 v{VD1}, {vr(GB+4*x,4)} offset:{slot*4096+x*1024}")
                if x == 3: k.provide("fill_"+name)
            return f
        return [rd(0),rd(1),rd(2),rd(3),wr(0),wr(1),wr(2),wr(3)]
    k.provide("GBfree")
    for f in transpose_ops("G0"): f()
    k.wait(vm=["dbgld"])
    def spin_global(name, load, test_ok):
        back = k.label(name+"_b"); slow = k.label(name+"_s")
        for t in test_ok: e(t)
        e(f"s_cbranch_scc0 {slow}")
        k.raw(back+":")
        k.ool.append("\n".join([slow+":", f"    s_mov_b32 s{sCNT}, {c['spin']}", slow+"_l:", "    "+load, "    s_waitcnt vmcnt(0)"]
            + ["    "+t+("\n    s_nop 1" if t.startswith("v_cmp") else "") for t in test_ok]
            + [f"    s_cbranch_scc1 {back}", f"    s_sub_u32 s{sCNT}, s{sCNT}, 1", f"    s_cmp_lg_u32 s{sCNT}, 0", f"    s_cbranch_scc1 {slow}_l"]
            + ([f"    s_mov_b32 s{sT2}, 1"] if name=="kv" else []) + [f"    s_branch {back}"]))
    spin_global("init", f"buffer_load_dword v{T1}, off, {sr(sDBG,4)}, 0 sc1",
                [f"v_cmp_eq_u32 vcc, 0, v{T1}", "s_cmp_eq_u64 vcc, 0"])
    k.wait_all(lds=True, vm=False)
    e("s_barrier")
    k.provide("all:fill_G0", "all:fill_KV0")
    stamp()
    e("s_mov_b64 exec, 1")
    k.lds("pad", f"ds_write_b128 v{U1}, {vr(ON,4)} offset:{KVS+2048}")
    k.lds("pad", f"ds_write_b128 v{U1}, {vr(ON,4)} offset:{2*KVS+2048}")
    e("s_mov_b64 exec, -1")

    kvo = lambda t: ((t>>3)%3)*KVS + (t&7)*KVT
    def rK(t):
        if t > 63: return
        k.require(f"all:fill_KV{t>>3}")
        k.lds(("k",t), f"ds_read_b128 {vr(KF,4)}, v{AK} offset:{kvo(t)}")
    def rV(t, f):
        if t > 63: return
        k.require(f"all:fill_KV{t>>3}")
        k.lds(("v",f,t), f"ds_read_b128 {vr(VF+4*f,4)}, v{AV1 if f else AV0} offset:{kvo(t)}")
        if f == 1 and t % 8 == 7: k.provide(f"done_KV{t>>3}")
    Sb = lambda t: SA if t % 2 == 0 else SB
    def QK(t):
        k.wait(lds=[("k",t)])
        e(f"v_mfma_f32_32x32x16_bf16 {vr(Sb(t),16)}, {vr(KF,4)}, {vr(Q,4)}, 0")
    def PV(t, f):
        k.wait(lds=[("v",f,t)])
        cin = "0" if (t == 0 and f == 0) else vr(O,16)
        e(f"v_mfma_f32_32x32x16_bf16 {vr(O,16)}, {vr(VF+4*f,4)}, {vr(Sb(t)+4*f,4)}, {cin}")
    names = ["G0","U0","G1","U1"]
    def wread(i):
        if i >= 128: return
        nm = names[i//32]; s_ = i % 32
        k.require("all:fill_"+nm)
        o = (s_>>2)*WV + WSLOT[nm]*4096 + (s_&3)*1024
        a = AWA
        if s_ >= 16: a = AWB; o -= 4*WV
        k.lds(("w",i), f"ds_read_b128 {vr(WB+4*(i%4),4)}, v{a} offset:{o}")
        if s_ == 31: k.provide("done_"+nm)
    side = []
    vside = []
    now = [0.0]
    def at(t, fn): side.append([t, fn]); side.sort(key=lambda x: x[0])
    def gu_op(i):
        def f():
            nm = names[i//32]; s_ = i % 32
            acc = GA if nm[0] == "G" else GB
            if s_ == 0:
                if nm == "G1": k.require("prod0")
                if nm[0] == "U": k.have.discard("GBfree")
            k.wait(lds=[("w",i)])
            e(f"v_mfma_f32_32x32x16_bf16 {vr(acc,16)}, {vr(WB+4*(i%4),4)}, {ar(4*s_,4)}, {'0' if s_==0 else vr(acc,16)}")
            if nm == "U1": k.provide(f"xdead{s_}")
            wread(i+4)
            if s_ == 31:
                if nm[0] == "G": sigmoid(now[0]+0.5, int(nm[1]))
                else: product(now[0]+0.4, int(nm[1]))
        return f
    def sigmoid(t0, half):
        span = c["gu_tiles"]/4 - 1.5
        n = 0
        for p in range(8):
            a, b = GA+2*p, GA+2*p+1
            seq = [(4, f"v_mul_f32 v{a}, {hex(f2u(-LOG2E))}, v{a}"), (4, f"v_mul_f32 v{b}, {hex(f2u(-LOG2E))}, v{b}"),
                   (8, f"v_exp_f32 v{a}, v{a}"), (8, f"v_exp_f32 v{b}, v{b}"),
                   (4, f"v_fma_f32 v{a}, v{a}, v{VC}, v{VC}"), (4, f"v_fma_f32 v{b}, v{b}, v{VC}, v{VC}"),
                   (8, f"v_rcp_f32 v{a}, v{a}"), (8, f"v_rcp_f32 v{b}, v{b}")]
            for cost, txt in seq:
                last = (p == 7 and txt is seq[-1][1])
                def f(txt=txt, last=last):
                    e(txt)
                    if last: k.provide(f"sig{half}")
                vside.append((t0 + span*n/64, cost, f)); n += 1
    def flag_store(stage):
        e(f"s_mov_b64 exec, {1<<stage}")
        k.vm(("flag",stage), f"buffer_store_dword v0, off, {sr(sWS,4)}, s{sFO} sc1")
        e("s_mov_b64 exec, -1")
    def product(t0, half):
        def f():
            k.require(f"sig{half}")
            for i in range(16): e(f"v_mul_f32 v{GB+i}, v{GA+i}, v{GB+i}")
            for i in range(8): e(f"v_cvt_pk_bf16_f32 v{GB+i}, v{GB+2*i}, v{GB+2*i+1}")
            k.provide(f"prod{half}")
            def st():
                e(f"s_lshl_b32 s{sT2}, s{sH}, 12"); e(f"s_add_u32 s{sT2}, s{sT2}, s{sHOS}")
                for j in range(2):
                    k.vm(("h",half), f"buffer_store_dwordx4 {vr(GB+4*j,4)}, v{AK}, {sr(sWSH,4)}, s{sT2} offen offset:{2048*half+1024*j} sc1")
            def free(): k.provide("GBfree")
            def fl():
                k.wait(vm=[("h",half)]); flag_store(2+half)
            at(now[0], st); at(now[0]+0.5, free); at(now[0]+2.5, fl)
        vside.append((t0, 96, f))
    def ks_off(i): return 16*i if i < 7 else 2+16*(i-7)
    def wd_dma(i, q):
        def f():
            k.require("all:done_U0" if i%4 < 2 else "all:done_G1", "vwd")
            if i >= 4: k.require(f"dw_used{i-4}")
            if i < 14: dma(("wd",i), VWG, sWD, (sWDO, ks_off(i)*16384 + q*8192), sWB, (i%4)*2048 + q*1024)
            else: dma(("wd",i), VWG, sWO, (sWOO, (i-14)*8*16384 + q*8192), sWB, (i%4)*2048 + q*1024)
        return f
    def h_load(i, mi):
        def f():
            k.require("hflag2" if i < 7 else "hflag3", f"xdead{2*(i%4)+mi}")
            if i >= 4: k.require(f"dstep{i-4}")
            so = soffs((sHOL, ks_off(i)*1024 + mi*HO_M))
            k.vm(("hl",i), f"buffer_load_dwordx4 {ar(8*(i%4)+4*mi,4)}, v{AK}, {sr(sWS,4)}, {so} offen sc1")
        return f
    def d_read(i, j, dst=None):
        ni, q = j>>1, j&1
        k.require("xdead11")
        if j == 0: k.wait(vm=[("wd",i)])
        d = dst if dst else ar(32+8*(i%2)+4*ni+2*q, 2)
        k.lds(("dw",i,ni), f"ds_read_b64_tr_b16 {d}, v{VD1 if ni else VD0} offset:{(i%4)*2048+q*1024}")
    def d_op(i, j):
        def f():
            ni, mi = j>>1, j&1
            k.require("xdead31")
            k.wait(lds=[("dw",i,ni)], vm=([("hl",i)] + ([("wd",i+1)] if i < 13 else [])) if j == 0 else [])
            acc = ar(64+16*(2*mi+ni),16)
            e(f"v_mfma_f32_32x32x16_bf16 {acc}, {ar(32+8*(i%2)+4*ni,4)}, {ar(8*(i%4)+4*mi,4)}, {'0' if i==0 else acc}")
            if i < 13: d_read(i+1, j)
            if j == 2: k.provide(f"dw_used{i}")
            if j == 3: k.provide(f"dstep{i}")
            hd = c["hd"]
            if j < 2 and i+hd < 14: h_load(i+hd, j)()
            if j >= 2 and i+4 < 18: wd_dma(i+4, j-2)()
        return f
    gops = [gu_op(i) for i in range(128)] + [d_op(i,j) for i in range(14) for j in range(4)]
    GT = c["gu_tiles"]; per = GT//4
    ng = []
    for q in range(4):
        base = [32//per + (1 if x < 32 % per else 0) for x in range(per)]
        if q == 2:
            base = [0] + [32//(per-1) + (1 if x < 32 % (per-1) else 0) for x in range(per-1)]
        ng += base
    rest = 64 - GT
    ng += [56//rest + (1 if x < 56 % rest else 0) for x in range(rest)]
    assert sum(ng) == len(gops) and max(ng) <= 4, ng
    nep = [0]
    def epoch(ts, tc, pre=None):
        row = nep[0]; nep[0] += 1; assert row < 16
        snap = set()
        def sig():
            if pre: pre()
            snap.update(x for x in k.have if x.startswith(("fill_","done_")))
            k.lds(("sig",row), f"ds_write_b32 v{PW}, v{PW} offset:{32*row}")
        def rd(): lock("T0"); k.lds(("chk",row), f"ds_read_b32 v{T0}, v{PR} offset:{32*row}")
        def chk():
            unlock("T0")
            k.wait(lds=[("chk",row)])
            back = k.label("ep_b"); slow = k.label("ep_s")
            e(f"v_cmp_eq_u32 vcc, 0, v{T0}"); e(f"s_cbranch_vccnz {slow}"); k.raw(back+":")
            k.ool.append("\n".join([slow+":", f"    s_mov_b32 s{sCNT}, {c['spin']*16}", "    s_setprio 0", slow+"_l:",
                f"    ds_read_b32 v{T0}, v{PR} offset:{32*row}", "    s_waitcnt lgkmcnt(0)", f"    v_cmp_eq_u32 vcc, 0, v{T0}", "    s_nop 1",
                f"    s_cbranch_vccz {slow}_x", f"    s_sub_u32 s{sCNT}, s{sCNT}, 1", f"    s_cmp_lg_u32 s{sCNT}, 0", f"    s_cbranch_scc1 {slow}_l",
                slow+"_x:", f"    s_setprio {curprio[0]}", f"    s_branch {back}"]))
            k.provide(*("all:"+x for x in snap))
        at(ts, sig); at(tc-0.3, rd); at(tc, chk)
    curprio = [0]
    kvld = f"buffer_load_dword v{T1}, v{VFL}, {sr(sWS,4)}, s{sFK} offen sc1"
    def kv_fetch(ch, tpoll, tdma):
        def poll(): lock("T1"); k.vm(("kp",ch), kvld)
        def pick():
            unlock("T1")
            k.wait(vm=[("kp",ch)])
            spin_global("kv", kvld, [f"v_cmp_ne_u32 vcc, 0, v{T1}", f"s_and_b32 s{sT2}, vcc_lo, 0xff", f"s_andn2_b32 s{sT2}, s{sT2}, s{sDONE}"])
            e(f"s_ff1_i32_b32 s{sT2}, s{sT2}"); e(f"s_bitset1_b32 s{sDONE}, s{sT2}")
            e(f"s_lshl_b32 s{sT2}, s{sT2}, 3"); e(f"s_add_u32 s{sT2}, s{sT2}, s{sW}"); e(f"s_lshl_b32 s{sT2}, s{sT2}, 11"); e(f"s_add_u32 s{sKVO}, s{sT2}, s{sKVH}")
        def d(q):
            def f():
                if ch >= 3: k.require(f"all:done_KV{ch-3}")
                e(f"s_mul_i32 s3, s{sW}, {KVT}")
                dma(("kvd",ch), AK, sWS, (sKVO, 1024*q), 3, (ch%3)*KVS + 1024*q, sc1=True)
            return f
        at(tpoll, poll); at(tdma-0.01, pick); at(tdma, d(0)); at(tdma+0.01, d(1))
    def kv_landed(ch):
        def f(): k.wait(vm=[("kvd",ch)]); k.provide(f"fill_KV{ch}")
        return f
    hld = f"buffer_load_dword v{T1}, v{T1}, {sr(sWS,4)}, s{sT2} offen sc1"
    def h_poll_text(): return [f"v_lshrrev_b32 v{T1}, 2, v{AK}", f"s_lshl_b32 s{sT2}, s{sMT}, 8"]
    def h_flag(stage, tpoll, tchk):
        def poll():
            lock("T1")
            for t in h_poll_text(): e(t)
            k.vm(("hp",stage), hld)
        def chk():
            unlock("T1")
            k.wait(vm=[("hp",stage)])
            spin_global("ho", "\n    ".join(h_poll_text()+[hld]), [f"v_cmp_gt_u32 vcc, {stage}, v{T1}", "s_cmp_eq_u64 vcc, 0"])
            k.provide(f"hflag{stage}")
        if tpoll is None: poll(); chk()
        else: at(tpoll, poll); at(tchk, chk)
    def pub_kv(): k.wait(vm=["kv"]); flag_store(1)
    at(c.get("t_pub",1.0), pub_kv)
    for x, f in enumerate(transpose_ops("U0")): at(1.5+0.15*x, f)
    kv_fetch(1, c.get("t_poll",3.0), c.get("t_dma",4.0))
    at(4.3, lambda: w_dma("G1", 1))
    epoch(5.4, 5.9, kv_landed(1))
    kv_fetch(2, 6.0, 7.0)
    for x, f in enumerate(transpose_ops("G1")): at(per-1.6+0.15*x, f)
    epoch(9.2, 13.0, kv_landed(2))
    kv_fetch(3, 12.0, 13.2)
    def u1dma(): k.require("all:done_G0"); w_dma("U1", 2)
    at(13.6, u1dma)
    epoch(17.0, 21.0, kv_landed(3))
    for x, f in enumerate(transpose_ops("U1")): at(2*per+1.6+0.15*x, f)
    kv_fetch(4, 20.0, 21.2)
    epoch(2*per+3.2, 3*per-1.6)
    def vwd():
        k.require("fill_U1"); lock("T0"); unlock("T0")
        e(f"v_lshrrev_b32 v{T0}, 8, v{AK}"); e(f"v_and_b32 v{T0}, 1, v{T0}"); e(f"v_lshlrev_b32 v{T0}, 6, v{T0}")
        e(f"v_and_b32 v{VWG}, 0x70, v{AK}"); e(f"v_xor_b32 v{VWG}, v{VWG}, v{T0}")
        e(f"v_lshrrev_b32 v{T0}, 7, v{AK}"); e(f"v_lshl_add_u32 v{VWG}, v{T0}, 10, v{VWG}")
        e(f"v_bfe_u32 v{VD0}, v0, 2, 2"); e(f"v_lshrrev_b32 v{T0}, 5, v0"); e(f"v_lshl_add_u32 v{VD0}, v{T0}, 2, v{VD0}"); e(f"v_lshlrev_b32 v{VD0}, 7, v{VD0}")
        e(f"v_and_b32 v{T0}, 3, v0"); e(f"v_lshl_add_u32 v{VD0}, v{T0}, 3, v{VD0}")
        e(f"v_and_b32 v{T0}, 16, v0"); e(f"v_lshl_add_u32 v{VD0}, v{T0}, 1, v{VD0}")
        e(f"v_and_b32 v{T0}, 8, v0"); e(f"v_lshl_add_u32 v{VD0}, v{T0}, 3, v{VD0}")
        e(f"v_xor_b32 v{VD1}, 64, v{VD0}")
        e(f"v_add_u32 v{VD0}, s{sWB}, v{VD0}"); e(f"v_add_u32 v{VD1}, s{sWB}, v{VD1}")
        k.provide("vwd")
    at(2*per+4.5, vwd)
    epoch(3*per, 29.5, kv_landed(4))
    kv_fetch(5, 28.4, 29.7)
    for i in range(4):
        for q in range(2): at(GT-5.5+0.5*i+0.2*q, wd_dma(i,q))
    h_flag(2, GT-5.8, GT-3.4)
    for i in range(c["hd"]):
        for mi in range(2): at(GT-3.2+0.5*i+0.2*mi, h_load(i,mi))
    for j in range(4): at(GT-1.2+0.2*j, lambda j=j: d_read(0,j))
    epoch(33.5, 37.5, kv_landed(5))
    kv_fetch(6, 36.4, 37.7)
    epoch(41.5, 45.3, kv_landed(6))
    tl = GT + (7-c["hd"])*4*(64-GT)/56
    kv_fetch(7, 46.0, 47.2)
    h_flag(3, tl-1.8, tl-0.4)
    epoch(51.0, 53.5, kv_landed(7))

    rK(0); rV(0,0)
    for i in range(4): wread(i)
    QK(0); rK(1)
    gi = 0
    ORD = {0:["PV2","QK","PV1"], 1:["PV2","QK","G","PV1"], 2:["PV2","QK","G","PV1","G"], 3:["PV2","G","QK","G","PV1","G"], 4:["PV2","G","QK","G","PV1","G","G"]}
    for t in range(64):
        if t % 8 in c["prio"]:
            curprio[0] = c["prio"][t%8]; e(f"s_setprio {curprio[0]}")
        if c["stamps"] and t in (6,8,16,36,48): stamp()
        S = Sb(t); Sp = Sb(t+1)
        b = "e c e e c e e c e e c e e c e e c e e c e e c e".split()
        cost = [8 if x == "e" else 4 for x in b]
        cum = [sum(cost[:i]) for i in range(len(b)+1)]
        ms = ORD[ng[t]]; n = len(ms); posn = {}
        for x, m in enumerate(ms):
            target = (cum[4] + 160*x/n) % 160
            p = min(range(len(b)), key=lambda i: abs(cum[i]-target))
            if m == "PV1": p = max(p, 16)
            posn.setdefault(p, []).append(m)
        ei = 0; ci = -1
        for p, tok in enumerate(b):
            now[0] = t + cum[p]/160
            for m in posn.get(p, []):
                if m == "PV2":
                    if t > 0: PV(t-1, 1)
                    rV(t, 1)
                elif m == "QK":
                    if t < 63: QK(t+1)
                    rK(t+2)
                elif m == "PV1":
                    PV(t, 0); rV(t+1, 0)
                else:
                    gops[gi](); gi += 1
                if side and side[0][0] <= now[0]:
                    side.pop(0)[1]()
            while vside and vside[0][0] <= now[0]:
                vside.pop(0)[2]()
            if tok == "e":
                e(f"v_exp_f32 v{S+ei}, v{S+ei}"); ei += 1
            else:
                if ci < 0:
                    if t > 0: e(f"v_cvt_pk_bf16_f32 v{Sp+7}, v{Sp+14}, v{Sp+15}")
                else: e(f"v_cvt_pk_bf16_f32 v{S+ci}, v{S+2*ci}, v{S+2*ci+1}")
                ci += 1
    assert not side and not vside and gi == len(gops), (side, vside)
    S = Sb(63)
    e(f"v_cvt_pk_bf16_f32 v{S+7}, v{S+14}, v{S+15}")
    PV(63, 1)
    e("s_setprio 0")
    stamp()
    e("s_nop 15")
    e("s_mov_b32 exec_lo, 0"); e(f"v_mov_b32 v{O+8}, v{O+12}"); e("s_mov_b32 exec_lo, -1")
    lo, hi = (2.0**-40, 2.0**40) if not c["force_fb"] else (2.0**40, 2.0**41)
    e(f"v_cmp_le_f32 vcc, {hex(f2u(lo))}, v{O+8}"); e(f"s_mov_b64 s[26:27], vcc")
    e(f"v_cmp_ge_f32 vcc, {hex(f2u(hi))}, v{O+8}"); e(f"s_and_b64 vcc, vcc, s[26:27]")
    e("s_cmp_eq_u64 vcc, -1"); e("s_cbranch_scc0 L_fallback")
    k.raw("L_fb_back:")
    e(f"v_rcp_f32 v{T0}, v{O+8}"); e(f"v_mul_f32 v{T0}, v{T0}, v{VG}")
    for i in range(8): e(f"v_mul_f32 v{O+i}, v{O+i}, v{T0}")
    for i in range(4): e(f"v_cvt_pk_bf16_f32 v{O+i}, v{O+2*i}, v{O+2*i+1}")
    e(f"s_lshl_b32 s{sT2}, s{sH}, 10"); e(f"s_add_u32 s{sT2}, s{sT2}, s{sHOS}"); e(f"s_add_u32 s{sT2}, s{sT2}, {112*1024}")
    k.vm("o", f"buffer_store_dwordx4 {vr(O,4)}, v{AK}, {sr(sWS,4)}, s{sT2} offen sc1")
    for i in range(14,18):
        for j in range(4): d_read(i, j, vr(GA+8*(i-14)+2*j, 2))
    k.wait(vm=["o"]); flag_store(4)
    RW = SA; RR = SA+4
    e(f"v_and_b32 v{T0}, 31, v0"); e(f"v_lshlrev_b32 v{RW+8}, 8, v{T0}"); e(f"s_lshl_b32 s3, s{sW}, 14"); e(f"v_add_u32 v{RW+8}, s3, v{RW+8}")
    e(f"v_and_b32 v{T0}, 7, v0"); e(f"v_lshrrev_b32 v{RW+9}, 5, v0"); e(f"v_xor_b32 v{T0}, v{T0}, v{RW+9}")
    for j in range(4):
        e(f"v_xor_b32 v{RW+9}, {2*j}, v{T0}"); e(f"v_lshl_add_u32 v{RW+j}, v{RW+9}, 4, v{RW+8}")
    e(f"v_lshrrev_b32 v{RW+8}, 3, v0"); e(f"v_and_b32 v{T0}, 7, v0"); e(f"v_lshlrev_b32 v{T0}, 1, v{T0}"); e(f"v_xor_b32 v{T0}, v{T0}, v{RW+8}")
    e(f"v_lshlrev_b32 v{T0}, 4, v{T0}"); e(f"v_lshl_add_u32 v{RR}, v{RW+8}, 8, v{T0}"); e(f"s_lshl_b32 s3, s{sW}, 11"); e(f"v_add_u32 v{RR}, s3, v{RR}")
    e(f"v_xor_b32 v{RR+1}, 16, v{RR}"); e(f"v_add_u32 v{RR+2}, 65536, v{RR}"); e(f"v_add_u32 v{RR+3}, 65536, v{RR+1}")
    e(f"v_and_b32 v{T0}, 0x70, v{AK}"); e(f"v_lshl_add_u32 v{RW+10}, v{RW+8}, 10, v{T0}")
    e(f"s_lshl_b32 s{sXO}, s{sMT}, 16"); e(f"s_lshl_b32 s3, s{sW}, 13"); e(f"s_add_u32 s{sXO}, s{sXO}, s3"); e(f"s_lshl_b32 s3, s{sNT}, 7"); e(f"s_add_u32 s{sXO}, s{sXO}, s3")
    k.wait_all(lds=True, vm=False)
    e("s_barrier")
    stamp()
    h_flag(4, None, None)
    stamp()
    e(f"s_mul_i32 s{sHOL}, s{sMT}, {2*HO_M}"); e(f"s_lshl_b32 s3, s{sW}, 10"); e(f"s_add_u32 s{sHOL}, s{sHOL}, s3")
    for i in range(4):
        for mi in range(2):
            so = soffs((sHOL, WS_HO + (112+8*i)*1024 + mi*HO_M))
            k.vm(("ol",i), f"buffer_load_dwordx4 {ar(8*i+4*mi,4)}, v{AK}, {sr(sWS,4)}, {so} offen sc1")
    for i in range(4):
        k.wait(vm=[("ol",i)])
        for j in range(4):
            ni, mi = j>>1, j&1
            acc = ar(64+16*(2*mi+ni),16)
            e(f"v_mfma_f32_32x32x16_bf16 {acc}, {vr(GA+8*i+4*ni,4)}, {ar(8*i+4*mi,4)}, {acc}")
    for jj in range(4):
        ni, mi = jj>>1, jj&1
        for j in range(4):
            k.lds("rw", f"ds_write_b128 v{RW+j}, {ar(64+16*(2*mi+ni)+4*j,4)} offset:{mi*8192+ni*128}")
    k.wait_all(lds=True, vm=False)
    e("s_barrier")
    stamp()
    RD = 64
    for p in range(8):
        for x in range(2):
            k.lds(("rr",p), f"ds_read_b128 {vr(RD+8*p+4*x,4)}, v{RR+x+2*(p>>2)} offset:{(p&3)*16384}")
    for p in range(1,8):
        k.wait(lds=[("rr",p)])
        for i in range(8): e(f"v_add_f32 v{RD+i}, v{RD+i}, v{RD+8*p+i}")
    for i in range(4): e(f"v_cvt_pk_bf16_f32 v{RD+i}, v{RD+2*i}, v{RD+2*i+1}")
    k.vm("out", f"buffer_store_dwordx4 {vr(RD,4)}, v{RW+10}, {sr(sOUT,4)}, s{sXO} offen")
    if c["stamps"]:
        k.wait_all(); stamp()
        e("s_memrealtime s[26:27]"); e("s_waitcnt lgkmcnt(0)")
        e(f"s_lshl_b32 s3, s2, 3"); e(f"s_add_u32 s3, s3, s{sW}"); e("s_lshl_b32 s3, s3, 7"); e(f"s_add_u32 s3, s3, {WS_ST}")
        vals = ["s98","s26","s100"] + [f"s{sST+i}" for i in range(nst[0])]
        for i, v in enumerate(vals):
            e(f"v_mov_b32 v{T0}, {v}"); e(f"buffer_store_dword v{T0}, off, {sr(sWS,4)}, s3 offset:{4*i}")
    k.raw("L_end:")
    e("s_endpgm")
    f = K(); g = f.e
    f.raw("L_fallback:")
    g("s_waitcnt vmcnt(0) lgkmcnt(0)")
    MX = T0; CN = SB
    g(f"v_mov_b32 v{MX}, 0xff800000"); g(f"s_mov_b32 s{sT2}, s{sKVH}"); g(f"s_mov_b32 s{sCNT}, 64")
    f.raw("L_fb1:")
    g(f"buffer_load_dwordx4 {vr(KF,4)}, v{AK}, {sr(sWS,4)}, s{sT2} offen sc1"); g("s_waitcnt vmcnt(0)")
    g(f"v_mfma_f32_32x32x16_bf16 {vr(SA,16)}, {vr(KF,4)}, {vr(Q,4)}, 0")
    for i in range(8): g(f"v_max3_f32 v{MX}, v{MX}, v{SA+2*i}, v{SA+2*i+1}")
    g(f"s_add_u32 s{sT2}, s{sT2}, 2048"); g(f"s_sub_u32 s{sCNT}, s{sCNT}, 1"); g(f"s_cmp_lg_u32 s{sCNT}, 0"); g("s_cbranch_scc1 L_fb1")
    g(f"v_mov_b32 v{T1}, v{MX}"); g(f"v_permlane32_swap_b32 v{MX}, v{T1}"); g(f"v_max_f32 v{MX}, v{MX}, v{T1}")
    for i in range(16): g(f"v_sub_f32 v{CN+i}, 0, v{MX}")
    for i in range(16): g(f"v_mov_b32 v{O+i}, 0")
    for i in range(8): g(f"v_mov_b32 v{VF+i}, 0x3f803f80")
    g(f"s_mov_b32 s{sT2}, s{sKVH}"); g(f"s_mov_b32 s{sCNT}, 64")
    f.raw("L_fb2:")
    g(f"buffer_load_dwordx4 {vr(KF,4)}, v{AK}, {sr(sWS,4)}, s{sT2} offen sc1")
    g("s_mov_b32 exec_lo, 0xffff"); g("s_mov_b32 exec_hi, 0xffff")
    g(f"buffer_load_dwordx4 {vr(VF,4)}, v{AV0}, {sr(sWS,4)}, s{sT2} offen sc1")
    g(f"buffer_load_dwordx4 {vr(VF+4,4)}, v{AV1}, {sr(sWS,4)}, s{sT2} offen sc1")
    g("s_mov_b64 exec, -1"); g("s_waitcnt vmcnt(0)")
    g(f"v_mfma_f32_32x32x16_bf16 {vr(SA,16)}, {vr(KF,4)}, {vr(Q,4)}, {vr(CN,16)}")
    for i in range(16): g(f"v_exp_f32 v{SA+i}, v{SA+i}")
    for i in range(8): g(f"v_cvt_pk_bf16_f32 v{SA+i}, v{SA+2*i}, v{SA+2*i+1}")
    g(f"v_mfma_f32_32x32x16_bf16 {vr(O,16)}, {vr(VF,4)}, {vr(SA,4)}, {vr(O,16)}")
    g(f"v_mfma_f32_32x32x16_bf16 {vr(O,16)}, {vr(VF+4,4)}, {vr(SA+4,4)}, {vr(O,16)}")
    g(f"s_add_u32 s{sT2}, s{sT2}, 2048"); g(f"s_sub_u32 s{sCNT}, s{sCNT}, 1"); g(f"s_cmp_lg_u32 s{sCNT}, 0"); g("s_cbranch_scc1 L_fb2")
    g("s_nop 15"); g("s_branch L_fb_back")

    hdr = open("cdna_kernels/%s.s.ref" % NAME).read().split("; Override launch geometry")[0]
    out = hdr + f"; @launch grid=(256,1,1) block=(512,1,1) lds={LDS_BYTES}\n"
    out += f""".amdgcn_target "amdgcn-amd-amdhsa--gfx950"
.text
.globl {NAME}_kernel
.p2align 8
.type {NAME}_kernel,@function
{NAME}_kernel:
"""
    out += k.text() + "\n" + "\n".join(k.ool) + "\n" + f.text() + f"""
.section .rodata,"a"
.p2align 6
.amdhsa_kernel {NAME}_kernel
  .amdhsa_next_free_vgpr 256
  .amdhsa_next_free_sgpr 102
  .amdhsa_accum_offset 128
  .amdhsa_group_segment_fixed_size 0
  .amdhsa_kernarg_size 88
  .amdhsa_user_sgpr_count 2
  .amdhsa_user_sgpr_kernarg_segment_ptr 1
  .amdhsa_system_sgpr_workgroup_id_x 1
.end_amdhsa_kernel
"""
    sys.stderr.write(f"instrs {len(k.ins)} nops {k.nops} ng {ng}\n")
    return out

if __name__ == "__main__":
    import json
    cfg = json.loads(sys.argv[2]) if len(sys.argv) > 2 else {}
    if "prio" in cfg: cfg["prio"] = {int(a): b for a, b in cfg["prio"].items()}
    open(sys.argv[1], "w").write(gen(cfg))
```

```python
import sys, math, struct
from asmlib import *

NAME = "gated_mix__mha_block__glu_gated_glu__prompt"
LOG2E = 1.4426950408889634
def f2u(x): return struct.unpack("<I", struct.pack("<f", x))[0]

KVT = 2064; KVS = 8*KVT
GW_L = 49664; PROG = 50688; RA = 51200; WV = 12288
LDS_BYTES = RA + 8*WV
WS_F = 0; WS_KV = 0x100000; WS_HO = 0x500000; HO_M = 144*1024; WS_ST = 0x1000000; WS_SZ = 0x2000000
AK,AV0,AV1,AWA,AWB,VC,VG,PW,PR,T0,T1,VWG,VFL,VD0,VD1 = range(1,16)
Q=16; KF=20; VF=24; SA=32; SB=48; O=64; GA=80; GB=96; WB=112; NWB=3; TT=124
sX,sWQ,sWO,sWG,sWU,sWD,sGW,sOUT,sDBG,sWS,sWSH,sDBL = range(28,76,4)
sW,sH,sR,sROT,sMT,sNT,sWB,sXO,sWQO,sKVO,sKVH,sFO,sFK,sHOS,sHOL,sWGO,sWDO,sWOO,sDONE,sT,sT2,sCNT = range(76,98)
sST = 4

DEF = dict(stamps=False, mapping="C", gu_tiles=36, hd=2, spin=1<<20,
           prio={0:3,3:2,6:1,7:0}, force_fb=False)

def gen(cfg):
    c = dict(DEF); c.update(cfg)
    k = K(); e = k.e
    nst = [0]
    locks = set()
    def lock(x):
        assert x not in locks, x
        locks.add(x)
    def unlock(x): locks.remove(x)
    def stamp(grp="main"):
        if not c["stamps"]: return
        if grp not in c.get("stgrp","main").split(",") and grp != "end": return
        i = nst[0]; nst[0] += 1
        assert i < 16
        e(("s_memrealtime" if c["stamps"] == "rt" else "s_memtime") + " s[26:27] ; STAMP"); k.wait_all(lds=True, vm=False)
        e(f"s_mov_b32 s{sST+i}, s26")
    def srd(s, p, n, gate=None):
        e(f"s_mov_b32 s{s}, s{p}"); e(f"s_and_b32 s{s+1}, s{p+1}, 0xffff")
        if gate is None: e(f"s_mov_b32 s{s+2}, {n}")
        else: e(f"s_cselect_b32 s{s+2}, {n}, 0")
        e(f"s_mov_b32 s{s+3}, 0x20000")
    def dma(tag, voff, rs, soff, ldsbase, ldsoff, sc1=False):
        if ldsbase is None: e(f"s_mov_b32 m0, {ldsoff}")
        else: e(f"s_add_u32 m0, s{ldsbase}, {ldsoff}")
        so = soffs(soff)
        k.vm(tag, f"buffer_load_dwordx4 v{voff}, {sr(rs,4)}, {so} offen {'sc1 ' if sc1 else ''}lds")
    def soffs(soff):
        s, imm = soff
        if imm == 0: return f"s{s}"
        e(f"s_add_u32 s{sT}, s{s}, {imm}")
        return f"s{sT}"

    e("s_cmp_ge_u32 s2, 256"); e("s_cbranch_scc1 L_end")
    e("s_load_dwordx16 s[4:19], s[0:1], 0")
    e("s_load_dwordx4 s[20:23], s[0:1], 64")
    e("s_load_dwordx2 s[24:25], s[0:1], 80")
    if c["stamps"]:
        e("s_memrealtime s[98:99]"); e(("s_memrealtime" if c["stamps"] == "rt" else "s_memtime") + " s[100:101]")
    e(f"v_lshrrev_b32 v{T0}, 6, v0")
    e(f"v_and_b32 v0, 63, v0")
    e(f"v_readfirstlane_b32 s{sW}, v{T0}")
    e(f"s_and_b32 s{sT}, s2, 7"); e(f"s_lshr_b32 s{sT2}, s2, 3")
    if c["mapping"] == "C":
        e(f"s_and_b32 s{sR}, s{sT}, 1"); e(f"s_lshl_b32 s{sR}, s{sR}, 2"); e(f"s_lshr_b32 s3, s{sT2}, 3"); e(f"s_add_u32 s{sR}, s{sR}, s3")
        e(f"s_lshr_b32 s{sH}, s{sT}, 1"); e(f"s_lshl_b32 s{sH}, s{sH}, 3"); e(f"s_and_b32 s3, s{sT2}, 7"); e(f"s_add_u32 s{sH}, s{sH}, s3")
        e(f"s_lshl_b32 s3, s{sR}, 1"); e(f"s_add_u32 s3, s3, s{sH}"); e(f"s_and_b32 s{sROT}, s3, 7")
    elif c["mapping"] == "A":
        e(f"s_mov_b32 s{sR}, s{sT}"); e(f"s_mov_b32 s{sH}, s{sT2}"); e(f"s_and_b32 s{sROT}, s{sH}, 7")
    elif c["mapping"] == "B":
        e(f"s_lshr_b32 s{sR}, s{sT2}, 2"); e(f"s_lshl_b32 s{sH}, s{sT}, 2"); e(f"s_and_b32 s3, s{sT2}, 3"); e(f"s_add_u32 s{sH}, s{sH}, s3")
        e(f"s_lshl_b32 s{sROT}, s3, 1")
    e(f"s_lshl_b32 s{sMT}, s{sT}, 2"); e(f"s_lshr_b32 s3, s{sT2}, 3"); e(f"s_add_u32 s{sMT}, s{sMT}, s3")
    e(f"s_and_b32 s{sNT}, s{sT2}, 7")
    X0=64; XR=68; T0R=72; T1R=73; GWR=74; T0D=75; T1D=76; GWD=77; U0=78; U1=79
    ln = 0
    e(f"v_lshlrev_b32 v{AK}, 4, v0")
    e(f"v_lshrrev_b32 v{U0}, 2, v0"); e(f"v_mul_u32_u24 v{T0D}, 3072, v{U0}")
    e(f"v_mul_u32_u24 v{VWG}, 3584, v{U0}")
    e(f"v_and_b32 v{U0}, 3, v0"); e(f"v_lshl_add_u32 v{VWG}, v{U0}, 4, v{VWG}")
    e(f"v_and_b32 v{U0}, 2, v0"); e(f"v_lshl_add_u32 v{T0D}, v{U0}, 9, v{T0D}")
    e(f"v_and_b32 v{U1}, 1, v0"); e(f"v_lshl_add_u32 v{T0D}, v{U1}, 4, v{T0D}")
    e(f"v_lshrrev_b32 v{U0}, 1, v0"); e(f"v_mul_u32_u24 v{T1D}, 3072, v{U0}"); e(f"v_lshl_add_u32 v{T1D}, v{U1}, 4, v{T1D}")
    e(f"v_lshrrev_b32 v{U0}, 4, v0"); e(f"v_and_b32 v{U1}, 7, v0"); e(f"v_xor_b32 v{U0}, v{U0}, v{U1}")
    e(f"v_lshlrev_b32 v{U0}, 4, v{U0}"); e(f"v_lshrrev_b32 v{U1}, 3, v0"); e(f"v_lshl_add_u32 v{X0}, v{U1}, 10, v{U0}")
    e(f"v_xor_b32 v{X0+1}, 64, v{X0}"); e(f"v_add_u32 v{X0+1}, 8192, v{X0+1}")
    e(f"v_add_u32 v{X0+2}, 16384, v{X0}"); e(f"v_add_u32 v{X0+3}, 16384, v{X0+1}")
    e(f"s_mul_i32 s{sWB}, s{sW}, {WV}"); e(f"s_add_u32 s{sWB}, s{sWB}, {RA}")
    e(f"s_lshl_b32 s{sT}, s{sR}, 3"); e(f"s_add_u32 s{sT}, s{sT}, s{sW}")
    e(f"s_lshl_b32 s{sXO}, s{sT}, 15")
    e(f"s_lshl_b32 s{sFO}, s{sT}, 12"); e(f"s_lshl_b32 s3, s{sH}, 7"); e(f"s_add_u32 s{sFO}, s{sFO}, s3")
    e(f"s_lshl_b32 s{sFK}, s{sW}, 12"); e(f"s_add_u32 s{sFK}, s{sFK}, s3")
    e(f"s_mul_i32 s{sHOS}, s{sT}, {HO_M}"); e(f"s_add_u32 s{sHOS}, s{sHOS}, {WS_HO}")
    e(f"s_lshl_b32 s{sKVH}, s{sH}, 17"); e(f"s_add_u32 s{sKVH}, s{sKVH}, {WS_KV}")
    e(f"s_lshl_b32 s{sKVO}, s{sT}, 11"); e(f"s_add_u32 s{sKVO}, s{sKVO}, s{sKVH}")
    e("s_waitcnt lgkmcnt(0)")
    srd(sWQ, 6, 512*1536*2); srd(sX, 4, 2048*512*2); srd(sGW, 18, 1024); srd(sWS, 24, WS_SZ)
    e(f"s_lshr_b32 s3, s2, 5"); e(f"s_or_b32 s3, s3, s{sW}"); e("s_cmp_eq_u32 s3, 0")
    e(f"s_cselect_b32 s{sDBL+2}, 256, 0")
    e("s_cbranch_scc0 L_nolead")
    e(f"v_mov_b32 v{T0}, 0"); e(f"v_lshlrev_b32 v{T1}, 7, v0"); e("s_lshl_b32 s3, s2, 13")
    e(f"buffer_store_dword v{T0}, v{T1}, {sr(sWS,4)}, s3 offen sc1")
    k.raw("L_nolead:")
    def wq_dma(g):
        def a():
            e(f"s_lshl_b32 s3, s{sROT}, 2"); e(f"s_add_u32 s3, s3, s{sW}"); e(f"s_add_u32 s3, s3, {8*g}"); e("s_and_b32 s3, s3, 31")
            e(f"s_mul_i32 s3, s3, {16*3072}"); e(f"s_lshl_b32 s{sT2}, s{sH}, 5"); e(f"s_add_u32 s{sWQO}, s3, s{sT2}")
            e(f"s_lshl_b32 s{sT2}, s{sW}, 10")
            dma(("wq",g), T0D, sWQ, (sWQO,0), sT2, 12288*g)
        def b():
            e(f"s_lshl_b32 s{sT2}, s{sW}, 9")
            e("s_mov_b32 exec_hi, 0")
            dma(("wq",g), T1D, sWQ, (sWQO,2048), sT2, 12288*g+8192)
            e("s_mov_b32 exec_hi, -1")
        return [a,b]
    def x_dma(j):
        def f(i):
            def g_():
                if i == 0:
                    e(f"s_add_u32 s3, s{sROT}, {j}"); e("s_and_b32 s3, s3, 7"); e("s_lshl_b32 s3, s3, 7"); e(f"s_add_u32 s{sCNT}, s3, s{sXO}")
                dma(("x",j), X0+i, sX, (sCNT,0), sWB, (j%3)*4096+i*1024)
            return g_
        return [f(i) for i in range(4)]
    def gw_dma():
        e(f"s_add_u32 s3, s{sROT}, s{sW}"); e("s_and_b32 s3, s3, 7"); e("s_lshl_b32 s3, s3, 7"); e(f"s_lshl_b32 s{sT2}, s{sW}, 7")
        e("s_mov_b64 exec, 0xff")
        dma(("wq",0), AK, sGW, (3,0), sT2, GW_L)
        e("s_mov_b64 exec, -1")
    for f_ in x_dma(0) + wq_dma(0) + [gw_dma]: f_()
    X1 = x_dma(1)
    e(f"s_mov_b32 s{sDBL}, s22"); e(f"s_and_b32 s{sDBL+1}, s23, 0xffff"); e(f"s_mov_b32 s{sDBL+3}, 0x20000")
    srd(sDBG, 22, 256); srd(sOUT, 20, 2048*512*2); srd(sWO, 8, 512*512*2); srd(sWD, 16, 1792*512*2)
    for s_, p_, n_ in ((sWG,12,512*1792*2),(sWU,14,512*1792*2),(sWSH,24,WS_SZ)):
        e(f"s_mov_b32 s{s_}, s{p_}"); e(f"s_and_b32 s{s_+1}, s{p_+1}, 0xffff"); e(f"s_mov_b32 s{s_+3}, 0x20000")
        e(f"s_cmp_lt_u32 s{sH}, 28"); e(f"s_cselect_b32 s{s_+2}, {n_}, 0")
    X1[0]()
    e(f"s_add_u32 s3, s{sW}, s{sROT}"); e("s_and_b32 s3, s3, 7"); e(f"s_mul_i32 s3, s3, {64*3584}")
    e(f"s_lshl_b32 s{sWGO}, s{sH}, 7"); e(f"s_add_u32 s{sWGO}, s{sWGO}, s3")
    e(f"s_lshr_b32 s3, s{sW}, 1"); e("s_lshl_b32 s3, s3, 2"); e(f"s_and_b32 s{sT}, s{sW}, 1"); e(f"s_add_u32 s3, s3, s{sT}")
    e(f"s_lshl_b32 s{sWDO}, s3, 14"); e(f"s_lshl_b32 s{sT}, s{sNT}, 7"); e(f"s_add_u32 s{sWDO}, s{sWDO}, s{sT}")
    e(f"s_lshl_b32 s{sWOO}, s{sW}, 14"); e(f"s_add_u32 s{sWOO}, s{sWOO}, s{sT}")
    e(f"s_mul_i32 s{sHOL}, s{sMT}, {2*HO_M}"); e(f"s_add_u32 s{sHOL}, s{sHOL}, {WS_HO}"); e("s_lshl_b32 s3, s3, 10"); e(f"s_add_u32 s{sHOL}, s{sHOL}, s3")
    e(f"s_lshl_b32 s{sDONE}, s{sW}, 11"); e(f"s_add_u32 s{sDONE}, s{sDONE}, s{sKVH}")
    X1[1]()
    e(f"v_and_b32 v{U0}, 31, v0"); e(f"v_lshlrev_b32 v{T0}, 7, v{U0}"); e(f"v_add_u32 v{T0}, s{sWB}, v{T0}")
    e(f"v_bfe_u32 v{U0}, v0, 1, 3"); e(f"v_lshrrev_b32 v{U1}, 5, v0"); e(f"v_xor_b32 v{U0}, v{U0}, v{U1}")
    for s_ in range(4):
        e(f"v_xor_b32 v{T1}, {2*s_}, v{U0}"); e(f"v_lshl_add_u32 v{XR+s_}, v{T1}, 4, v{T0}")
    e(f"v_bfe_u32 v{U0}, v0, 2, 2"); e(f"v_lshl_add_u32 v{U0}, v{U1}, 3, v{U0}")
    e(f"v_and_b32 v{T0}, 3, v0"); e(f"v_lshlrev_b32 v{T0}, 3, v{T0}")
    e(f"v_lshl_add_u32 v{T1R}, v{U0}, 5, v{T0}")
    e(f"v_lshl_add_u32 v{T0R}, v{U0}, 6, v{T0}"); e(f"v_and_b32 v{T1}, 16, v0"); e(f"v_lshl_add_u32 v{T0R}, v{T1}, 1, v{T0R}")
    e(f"v_lshlrev_b32 v{GWR}, 4, v{U1}"); e(f"v_add_u32 v{GWR}, {GW_L}, v{GWR}")
    e(f"v_add_u32 v{VD0}, s{sWB}, v{T0R}")
    e(f"v_add_u32 v{VD1}, s{sWB}, v{AK}")
    e(f"v_add_u32 v{AWA}, {RA}, v{AK}"); e(f"v_add_u32 v{AWB}, {RA+4*WV}, v{AK}")
    X1[2]()
    e(f"v_and_b32 v{T0}, 15, v0"); e(f"v_lshl_add_u32 v{T0}, v{U1}, 5, v{T0}"); e(f"v_lshlrev_b32 v{T0}, 4, v{T0}")
    e(f"v_add_u32 v{AV0}, 1024, v{T0}")
    e("s_mov_b32 exec_lo, 0x0ff00000"); e("s_mov_b32 exec_hi, 0x0ff00000")
    e(f"v_lshlrev_b32 v{T0}, 9, v{U1}"); e(f"v_add_u32 v{AV0}, 1024, v{T0}")
    e("s_mov_b64 exec, -1")
    e(f"v_add_u32 v{AV1}, 256, v{AV0}")
    e("s_mov_b32 exec_lo, 0xf00f0000"); e("s_mov_b32 exec_hi, 0xf00f0000")
    e(f"v_mov_b32 v{AV0}, 2048"); e(f"v_mov_b32 v{AV1}, 2048")
    e("s_mov_b64 exec, -1")
    e(f"s_lshl_b32 s3, s{sW}, 2"); e(f"s_add_u32 s3, s3, {PROG}"); e(f"v_mov_b32 v{PW}, s3")
    e(f"v_and_b32 v{T0}, 7, v0"); e(f"v_lshlrev_b32 v{VFL}, 15, v{T0}"); e(f"v_lshlrev_b32 v{PR}, 2, v{T0}"); e(f"v_add_u32 v{PR}, {PROG}, v{PR}")
    e(f"v_lshlrev_b32 v{T0}, 3, v0"); e(f"v_mov_b32 v{WB}, 0"); e(f"v_mov_b32 v{WB+1}, 0")
    k.lds("z", f"ds_write_b64 v{T0}, {vr(WB,2)} offset:{PROG}")
    X1[3]()
    stamp()

    WSLOT = dict(G0=2,U0=0,G1=1,U1=2)
    def w_dma(name, x):
        def f():
            if name == "U1": k.require("all:done_G0")
            rs = sWG if name[0]=="G" else sWU
            dma(("W",name,x), VWG, rs, (sWGO, int(name[1])*64 + x*16*3584), sWB, WSLOT[name]*4096 + x*1024)
        return f
    FS = lambda s_: 32 + 12*(s_%2); Z=56
    def qkv_reads(s_):
        g = s_//8; b = FS(s_); o0 = 12288*g + 1024*(s_%8); o1 = 12288*g + 8192 + 512*(s_%8)
        k.lds(("f",s_), f"ds_read_b64_tr_b16 {vr(b,2)}, v{T0R} offset:{o0}")
        k.lds(("f",s_), f"ds_read_b64_tr_b16 {vr(b+2,2)}, v{T0R} offset:{o0+256}")
        k.lds(("f",s_), f"ds_read_b64_tr_b16 {vr(b+4,2)}, v{T1R} offset:{o1}")
        k.lds(("f",s_), f"ds_read_b64_tr_b16 {vr(b+6,2)}, v{T1R} offset:{o1+128}")
        k.lds(("f",s_), f"ds_read_b128 {vr(b+8,4)}, v{GWR} offset:{32*s_}")
    def dbg_ld():
        e(f"v_lshrrev_b32 v{T1}, 1, v{AK}"); e(f"v_and_b32 v{T1}, 0xf8, v{T1}")
        k.vm("dbgld", f"buffer_load_dword v{T1}, v{T1}, {sr(sDBG,4)}, 0 offen sc1")
    W1, W2, W3 = wq_dma(1), wq_dma(2), wq_dma(3)
    DQ = {0: W1 + x_dma(2), 1: x_dma(3) + W2[:1], 2: W2[1:] + x_dma(4), 3: x_dma(5) + W3[:1], 4: W3[1:] + x_dma(6), 5: x_dma(7),
          6: [w_dma("G0",x) for x in range(3)], 7: [w_dma("G0",3), dbg_ld]}
    def x_reads(j):
        k.wait(vm=[("x",j)])
        for s_ in range(4):
            k.lds(("xr",j), f"ds_read_b128 {ar(16*j+4*s_,4)}, v{XR+s_} offset:{(j%3)*4096}")
    x_reads(0)
    e(f"v_mov_b32 v{T0}, 1"); e("s_lshl_b32 s3, s2, 3")
    k.vm("dbgst", f"buffer_store_dword v{T0}, off, {sr(sDBL,4)}, s3 sc1")
    k.wait(vm=[("wq",0)], lds=["z"])
    e("s_barrier"); qkv_reads(0)
    for j in range(8):
        dq = DQ[j]
        stamp("qkv")
        for s_ in range(4*j, 4*j+4):
            n_ = -(-len(dq)//(4*j+4-s_))
            if s_ % 8 == 7 and s_ < 31:
                k.wait(vm=[("wq",(s_+1)//8)])
                e("s_barrier")
            if s_ < 31: qkv_reads(s_+1)
            if s_ % 4 == 3 and j < 7: x_reads(j+1)
            if n_ >= 1: dq.pop(0)()
            k.wait(lds=[("f",s_),("xr",j)])
            b = FS(s_); xa = 4*s_
            z0 = "0" if s_ == 0 else None
            e(f"v_mfma_f32_32x32x16_bf16 {vr(GA,16)}, {vr(b,4)}, {ar(xa,4)}, {z0 or vr(GA,16)}")
            e(f"v_mfma_f32_4x4x4_16b_bf16 {vr(Z,4)}, {vr(b+8,2)}, {ar(xa,2)}, {z0 or vr(Z,4)}")
            e(f"v_mfma_f32_32x32x16_bf16 {vr(GB,16)}, {ar(xa,4)}, {vr(b+4,4)}, {z0 or vr(GB,16)}")
            e(f"v_mfma_f32_4x4x4_16b_bf16 {vr(Z+4,4)}, {vr(b+10,2)}, {ar(xa+2,2)}, {z0 or vr(Z+4,4)}")
            if n_ >= 2: dq.pop(0)()
        assert not dq
    stamp(); stamp("qkv")
    KT=112; VT=116; ON=120
    e(f"s_mul_i32 s{sWQO}, s{sW}, {KVT}"); e(f"v_add_u32 v{U0}, s{sWQO}, v{AK}"); e(f"v_mov_b32 v{U1}, s{sWQO}")
    for i in range(4): e(f"v_mov_b32 v{ON+i}, 0x3f803f80")
    for i in range(4): e(f"v_cvt_pk_bf16_f32 v{KT+i}, v{GA+8+2*i}, v{GA+9+2*i}")
    k.vm("kv", f"buffer_store_dwordx4 {vr(KT,4)}, v{AK}, {sr(sWS,4)}, s{sKVO} offen sc1")
    for i in range(4): e(f"v_cvt_pk_bf16_f32 v{VT+i}, v{GB+2*i}, v{GB+1+2*i}")
    e("s_mov_b32 exec_lo, 0xffff0000"); e("s_mov_b32 exec_hi, 0xffff0000")
    for i in range(4): e(f"v_cvt_pk_bf16_f32 v{VT+i}, v{GB+8+2*i}, v{GB+9+2*i}")
    e("s_mov_b64 exec, -1")
    k.vm("kv", f"buffer_store_dwordx4 {vr(VT,4)}, v{AK}, {sr(sWS,4)}, s{sKVO} offen offset:1024 sc1")
    k.lds("kvw", f"ds_write_b128 v{U0}, {vr(KT,4)}")
    k.lds("kvw", f"ds_write_b128 v{U0}, {vr(VT,4)} offset:1024")
    e("s_mov_b64 exec, 1"); k.lds("kvw", f"ds_write_b128 v{U1}, {vr(ON,4)} offset:2048"); e("s_mov_b64 exec, -1")
    w_dma("U0", 0)()
    e(f"s_mov_b32 s3, {f2u(0.25*LOG2E)}")
    for i in range(8): e(f"v_mul_f32 v{GA+i}, s3, v{GA+i}")
    for i in range(4): e(f"v_cvt_pk_bf16_f32 v{Q+i}, v{GA+2*i}, v{GA+1+2*i}")
    e(f"v_add_f32 v{Z}, v{Z}, v{Z+4}"); e(f"v_mov_b32 v{Z+1}, v{Z}")
    e(f"v_permlane32_swap_b32 v{Z}, v{Z+1}")
    e(f"v_add_f32 v{Z}, v{Z}, v{Z+1}"); e(f"v_mul_f32 v{Z}, {hex(f2u(LOG2E))}, v{Z}")
    e(f"v_exp_f32 v{VC}, v{Z}"); e(f"v_exp_f32 v{VG}, -v{Z}")
    e(f"v_add_f32 v{VC}, 1.0, v{VC}"); e(f"v_add_f32 v{VG}, 1.0, v{VG}")
    e(f"v_min_f32 v{VC}, {hex(f2u(2.0**100))}, v{VC}"); e(f"v_rcp_f32 v{VG}, v{VG}")
    def tr_rd(name, x, tmp=TT):
        def f():
            if tmp == TT: lock("TT")
            k.wait(vm=[("W",name,x)])
            o = WSLOT[name]*4096 + x*1024
            k.lds(("tr",name,x), f"ds_read_b64_tr_b16 {vr(tmp,2)}, v{VD0} offset:{o}")
            k.lds(("tr",name,x), f"ds_read_b64_tr_b16 {vr(tmp+2,2)}, v{VD0} offset:{o+256}")
        return f
    def tr_wr(name, x, tmp=TT):
        def f():
            if tmp == TT: unlock("TT")
            k.wait(lds=[("tr",name,x)])
            k.lds(("tw",name), f"ds_write_b128 v{VD1}, {vr(tmp,4)} offset:{WSLOT[name]*4096+x*1024}")
            if x == 3: k.provide("fill_"+name)
        return f
    for x in range(4): tr_rd("G0", x, GB+4*x)()
    for x in range(4): tr_wr("G0", x, GB+4*x)()
    k.wait(vm=["dbgld"])
    def spin_global(name, load, test_ok):
        back = k.label(name+"_b"); slow = k.label(name+"_s")
        for t in test_ok: e(t)
        e(f"s_cbranch_scc0 {slow}")
        k.raw(back+":")
        k.ool.append("\n".join([slow+":", f"    s_mov_b32 s{sCNT}, {c['spin']}", slow+"_l:", "    "+load, "    s_waitcnt vmcnt(0)"]
            + ["    "+t+("\n    s_nop 1" if t.startswith("v_cmp") else "") for t in test_ok]
            + [f"    s_cbranch_scc1 {back}", f"    s_sub_u32 s{sCNT}, s{sCNT}, 1", f"    s_cmp_lg_u32 s{sCNT}, 0", f"    s_cbranch_scc1 {slow}_l"]
            + [f"    s_branch {back}"]))
    spin_global("init", f"v_lshrrev_b32 v{T1}, 1, v{AK}\n    v_and_b32 v{T1}, 0xf8, v{T1}\n    buffer_load_dword v{T1}, v{T1}, {sr(sDBG,4)}, 0 offen sc1",
                [f"v_cmp_eq_u32 vcc, 0, v{T1}", "s_cmp_eq_u64 vcc, 0"])
    k.wait_all(lds=True, vm=False)
    e("s_barrier")
    k.provide("all:fill_G0", "all:fill_KV0")
    stamp()
    e("s_mov_b64 exec, 1")
    k.lds("pad", f"ds_write_b128 v{U1}, {vr(ON,4)} offset:{KVS+2048}")
    k.lds("pad", f"ds_write_b128 v{U1}, {vr(ON,4)} offset:{2*KVS+2048}")
    e("s_mov_b64 exec, -1")

    kvo = lambda t: ((t>>3)%3)*KVS + (t&7)*KVT
    def rK(t):
        if t > 63: return
        k.require(f"all:fill_KV{t>>3}")
        k.lds(("k",t), f"ds_read_b128 {vr(KF,4)}, v{AK} offset:{kvo(t)}")
    def rV(t, f):
        if t > 63: return
        k.require(f"all:fill_KV{t>>3}")
        k.lds(("v",f,t), f"ds_read_b128 {vr(VF+4*f,4)}, v{AV1 if f else AV0} offset:{kvo(t)}")
        if f == 1 and t % 8 == 7: k.provide(f"done_KV{t>>3}")
    Sb = lambda t: SA if t % 2 == 0 else SB
    def QK(t):
        k.wait(lds=[("k",t)])
        e(f"v_mfma_f32_32x32x16_bf16 {vr(Sb(t),16)}, {vr(KF,4)}, {vr(Q,4)}, 0")
    def PV(t, f):
        k.wait(lds=[("v",f,t)])
        cin = "0" if (t == 0 and f == 0) else vr(O,16)
        e(f"v_mfma_f32_32x32x16_bf16 {vr(O,16)}, {vr(VF+4*f,4)}, {vr(Sb(t)+4*f,4)}, {cin}")
    names = ["G0","U0","G1","U1"]
    def wread(i):
        if i >= 128: return
        nm = names[i//32]; s_ = i % 32
        k.require("all:fill_"+nm)
        o = (s_>>2)*WV + WSLOT[nm]*4096 + (s_&3)*1024
        a = AWA
        if s_ >= 16: a = AWB; o -= 4*WV
        k.lds(("w",i), f"ds_read_b128 {vr(WB+4*(i%NWB),4)}, v{a} offset:{o}")
        if s_ == 31: k.provide("done_"+nm)
    side = []
    vside = []
    now = [0.0]
    def at(t, fn): side.append([t, fn]); side.sort(key=lambda x: x[0])
    def gu_op(i):
        def f():
            nm = names[i//32]; s_ = i % 32
            acc = GA if nm[0] == "G" else GB
            if s_ == 0:
                if nm == "G1": k.require("prod0")
            k.wait(lds=[("w",i)])
            e(f"v_mfma_f32_32x32x16_bf16 {vr(acc,16)}, {vr(WB+4*(i%NWB),4)}, {ar(4*s_,4)}, {'0' if s_==0 else vr(acc,16)}")
            if nm == "U1": k.provide(f"xdead{s_}")
            wread(i+NWB)
            if s_ == 31:
                if nm[0] == "G": sigmoid(now[0]+0.5, int(nm[1]))
                else: product(now[0]+0.4, int(nm[1]))
        return f
    def sigmoid(t0, half):
        span = c["gu_tiles"]/4 - 1.5
        n = 0
        for p in range(8):
            a, b = GA+2*p, GA+2*p+1
            seq = [(4, f"v_mul_f32 v{a}, {hex(f2u(-LOG2E))}, v{a}"), (4, f"v_mul_f32 v{b}, {hex(f2u(-LOG2E))}, v{b}"),
                   (8, f"v_exp_f32 v{a}, v{a}"), (8, f"v_exp_f32 v{b}, v{b}"),
                   (4, f"v_fma_f32 v{a}, v{a}, v{VC}, v{VC}"), (4, f"v_fma_f32 v{b}, v{b}, v{VC}, v{VC}"),
                   (8, f"v_rcp_f32 v{a}, v{a}"), (8, f"v_rcp_f32 v{b}, v{b}")]
            for cost, txt in seq:
                last = (p == 7 and txt is seq[-1][1])
                def f(txt=txt, last=last):
                    e(txt)
                    if last: k.provide(f"sig{half}")
                vside.append((t0 + span*n/64, cost, f)); n += 1
    def flag_store(stage):
        e(f"s_mov_b64 exec, {1<<stage}")
        k.vm(("flag",stage), f"buffer_store_dword v0, off, {sr(sWS,4)}, s{sFO} sc1")
        e("s_mov_b64 exec, -1")
    def product(t0, half):
        def f():
            k.require(f"sig{half}")
            for i in range(16): e(f"v_mul_f32 v{GB+i}, v{GA+i}, v{GB+i}")
            for i in range(8): e(f"v_cvt_pk_bf16_f32 v{GB+i}, v{GB+2*i}, v{GB+2*i+1}")
            k.provide(f"prod{half}")
            def st():
                e(f"s_lshl_b32 s{sT2}, s{sH}, 12"); e(f"s_add_u32 s{sT2}, s{sT2}, s{sHOS}")
                for j in range(2):
                    k.vm(("h",half), f"buffer_store_dwordx4 {vr(GB+4*j,4)}, v{AK}, {sr(sWSH,4)}, s{sT2} offen offset:{2048*half+1024*j} sc1")
            def fl():
                k.wait(vm=[("h",half)]); flag_store(2+half)
            at(now[0], st); at(now[0]+2.5, fl)
        vside.append((t0, 96, f))
    def ks_off(i): return 16*i if i < 7 else 2+16*(i-7)
    def wd_dma(i, q):
        def f():
            k.require("all:done_U0" if i%4 < 2 else "all:done_G1", "vwd")
            if i >= 4: k.require(f"dw_used{i-4}")
            if i < 14: dma(("wd",i), VWG, sWD, (sWDO, ks_off(i)*16384 + q*8192), sWB, (i%4)*2048 + q*1024)
            else: dma(("wd",i), VWG, sWO, (sWOO, (i-14)*8*16384 + q*8192), sWB, (i%4)*2048 + q*1024)
        return f
    def h_load(i, mi):
        def f():
            k.require("hflag2" if i < 7 else "hflag3", f"xdead{2*(i%4)+mi}")
            if i >= 4: k.require(f"dstep{i-4}")
            so = soffs((sHOL, ks_off(i)*1024 + mi*HO_M))
            k.vm(("hl",i), f"buffer_load_dwordx4 {ar(8*(i%4)+4*mi,4)}, v{AK}, {sr(sWS,4)}, {so} offen sc1")
        return f
    def d_read(i, j, dst=None):
        ni, q = j>>1, j&1
        k.require("xdead11")
        if j == 0: k.wait(vm=[("wd",i)])
        d = dst if dst else ar(32+8*(i%2)+4*ni+2*q, 2)
        k.lds(("dw",i,ni), f"ds_read_b64_tr_b16 {d}, v{VD1 if ni else VD0} offset:{(i%4)*2048+q*1024}")
    def d_op(i, j):
        def f():
            ni, mi = j>>1, j&1
            k.require("xdead31")
            k.wait(lds=[("dw",i,ni)], vm=([("hl",i)] + ([("wd",i+1)] if i < 13 else [])) if j == 0 else [])
            acc = ar(64+16*(2*mi+ni),16)
            e(f"v_mfma_f32_32x32x16_bf16 {acc}, {ar(32+8*(i%2)+4*ni,4)}, {ar(8*(i%4)+4*mi,4)}, {'0' if i==0 else acc}")
            if i < 13: d_read(i+1, j)
            if j == 2: k.provide(f"dw_used{i}")
            if j == 3: k.provide(f"dstep{i}")
            hd = c["hd"]
            if j < 2 and i+hd < 14: h_load(i+hd, j)()
            if j >= 2 and i+4 < 18: wd_dma(i+4, j-2)()
        return f
    gops = [gu_op(i) for i in range(128)] + [d_op(i,j) for i in range(14) for j in range(4)]
    GT = c["gu_tiles"]; per = GT//4
    ng = []
    for q in range(4):
        base = [32//per + (1 if x < 32 % per else 0) for x in range(per)]
        if q == 2:
            base = [0] + [32//(per-1) + (1 if x < 32 % (per-1) else 0) for x in range(per-1)]
        ng += base
    rest = 64 - GT
    ng += [56//rest + (1 if x < 56 % rest else 0) for x in range(rest)]
    assert sum(ng) == len(gops) and max(ng) <= 4, ng
    nep = [0]
    def epoch(ts, tc, pre=None):
        row = nep[0]; nep[0] += 1; assert row < 16
        snap = set()
        def sig():
            if pre: pre()
            snap.update(x for x in k.have if x.startswith(("fill_","done_")))
            k.lds(("sig",row), f"ds_write_b32 v{PW}, v{PW} offset:{32*row}")
        def rd(): lock("T0"); k.lds(("chk",row), f"ds_read_b32 v{T0}, v{PR} offset:{32*row}")
        def chk():
            unlock("T0")
            k.wait(lds=[("chk",row)])
            back = k.label("ep_b"); slow = k.label("ep_s")
            e(f"v_cmp_eq_u32 vcc, 0, v{T0}"); e(f"s_cbranch_vccnz {slow}"); k.raw(back+":")
            k.ool.append("\n".join([slow+":", f"    s_mov_b32 s{sCNT}, {c['spin']*16}", "    s_setprio 0", slow+"_l:",
                f"    ds_read_b32 v{T0}, v{PR} offset:{32*row}", "    s_waitcnt lgkmcnt(0)", f"    v_cmp_eq_u32 vcc, 0, v{T0}", "    s_nop 1",
                f"    s_cbranch_vccz {slow}_x", f"    s_sub_u32 s{sCNT}, s{sCNT}, 1", f"    s_cmp_lg_u32 s{sCNT}, 0", f"    s_cbranch_scc1 {slow}_l",
                slow+"_x:", f"    s_setprio {curprio[0]}", f"    s_branch {back}"]))
            k.provide(*("all:"+x for x in snap))
        at(ts, sig); at(tc-0.3, rd); at(tc, chk)
    curprio = [0]
    def kv_fetch(ch, tpoll, tdma):
        pre = [f"s_add_u32 s{sT2}, s{sR}, {ch}", f"s_and_b32 s{sT2}, s{sT2}, 7", f"s_lshl_b32 s{sT2}, s{sT2}, 15", f"s_add_u32 s{sT2}, s{sT2}, s{sFK}"] if ch < 3 else []
        ld = f"buffer_load_dword v{T1}, off, {sr(sWS,4)}, s{sT2} sc1" if ch < 3 else f"buffer_load_dword v{T1}, v{VFL}, {sr(sWS,4)}, s{sFK} offen sc1"
        def poll():
            lock("T1")
            for t in pre: e(t)
            k.vm(("kp",ch), ld)
        def pick():
            unlock("T1")
            k.wait(vm=[("kp",ch)])
            spin_global("kv", "\n    ".join(pre+[ld]), [f"v_cmp_eq_u32 vcc, 0, v{T1}", "s_cmp_eq_u64 vcc, 0"])
            k.provide(f"kvflag{ch}")
        def d(q):
            def f():
                k.require(f"kvflag{min(ch,3)}")
                if ch >= 3: k.require(f"all:done_KV{ch-3}")
                if q == 0:
                    e(f"s_add_u32 s{sT2}, s{sR}, {ch}"); e(f"s_and_b32 s{sT2}, s{sT2}, 7"); e(f"s_lshl_b32 s{sT2}, s{sT2}, 14"); e(f"s_add_u32 s{sKVO}, s{sT2}, s{sDONE}")
                dma(("kvd",ch), AK, sWS, (sKVO, 1024*q), sWQO, (ch%3)*KVS + 1024*q, sc1=True)
            return f
        if ch <= 3: at(tpoll, poll); at(tdma-0.01, pick)
        at(tdma, d(0)); at(tdma+(0.01 if ch == 1 else 0.4), d(1))
    def kv_landed(ch):
        def f(): k.wait(vm=[("kvd",ch)]); k.provide(f"fill_KV{ch}")
        return f
    hld = f"buffer_load_dword v{T1}, v{VFL}, {sr(sWS,4)}, s{sFK} offen sc1"
    def h_flag(stage, tpoll, tchk):
        def poll():
            lock("T1"); k.require("vwd")
            k.vm(("hp",stage), hld)
        def chk():
            unlock("T1")
            k.wait(vm=[("hp",stage)])
            spin_global("ho", hld, [f"v_cmp_gt_u32 vcc, {stage}, v{T1}", "s_cmp_eq_u64 vcc, 0"])
            k.provide(f"hflag{stage}")
        if tpoll is None: poll(); chk()
        else: at(tpoll, poll); at(tchk, chk)
    def pub_kv(): k.wait(vm=["kv"]); flag_store(1)
    at(c.get("t_pub",0.6), pub_kv)
    def w_tile(name, t0, step, lag, first=0):
        for x in range(4):
            if x >= first: at(t0+step*x, w_dma(name,x))
            at(t0+step*x+lag, tr_rd(name,x)); at(t0+step*x+lag+0.35, tr_wr(name,x))
    w_tile("U0", -0.6, 0.8, 2.4, first=1)
    kv_fetch(1, c.get("t_poll",2.5), c.get("t_dma",3.6))
    epoch(5.3, 5.9, kv_landed(1))
    kv_fetch(2, 4.6, 6.1)
    w_tile("G1", 7.0, 1.0, 2.6)
    epoch(9.5, 13.0, kv_landed(2))
    kv_fetch(3, 11.4, 13.2)
    epoch(13.5, 2*per-1.3)
    w_tile("U1", 14.2, 1.0, 2.6)
    epoch(2*per-0.4, 21.0, kv_landed(3))
    kv_fetch(4, 0, 21.2)
    epoch(21.5, 3*per-1.5)
    def vwd():
        k.require("fill_U1", "kvflag3"); lock("T0"); unlock("T0")
        e(f"v_lshrrev_b32 v{T0}, 8, v{AK}"); e(f"v_and_b32 v{T0}, 1, v{T0}"); e(f"v_lshlrev_b32 v{T0}, 6, v{T0}")
        e(f"v_and_b32 v{VWG}, 0x70, v{AK}"); e(f"v_xor_b32 v{VWG}, v{VWG}, v{T0}")
        e(f"v_lshrrev_b32 v{T0}, 7, v{AK}"); e(f"v_lshl_add_u32 v{VWG}, v{T0}, 10, v{VWG}")
        e(f"v_bfe_u32 v{VD0}, v0, 2, 2"); e(f"v_lshrrev_b32 v{T0}, 5, v0"); e(f"v_lshl_add_u32 v{VD0}, v{T0}, 2, v{VD0}"); e(f"v_lshlrev_b32 v{VD0}, 7, v{VD0}")
        e(f"v_and_b32 v{T0}, 3, v0"); e(f"v_lshl_add_u32 v{VD0}, v{T0}, 3, v{VD0}")
        e(f"v_and_b32 v{T0}, 16, v0"); e(f"v_lshl_add_u32 v{VD0}, v{T0}, 1, v{VD0}")
        e(f"v_and_b32 v{T0}, 8, v0"); e(f"v_lshl_add_u32 v{VD0}, v{T0}, 3, v{VD0}")
        e(f"v_xor_b32 v{VD1}, 64, v{VD0}")
        e(f"v_add_u32 v{VD0}, s{sWB}, v{VD0}"); e(f"v_add_u32 v{VD1}, s{sWB}, v{VD1}")
        e(f"v_and_b32 v{VFL}, 15, v0"); e(f"v_lshlrev_b32 v{VFL}, 9, v{VFL}")
        e(f"s_lshr_b32 s3, s{sW}, 1"); e("s_lshl_b32 s3, s3, 7"); e(f"s_lshl_b32 s{sFK}, s{sMT}, 13"); e(f"s_add_u32 s{sFK}, s{sFK}, s3")
        k.provide("vwd")
    at(22.5, vwd)
    epoch(3*per-0.2, 29.5, kv_landed(4))
    kv_fetch(5, 0, 29.7)
    for i in range(4):
        for q in range(2): at((3*per-1 if i < 2 else GT-6.7)+1.0*i+0.5*q, wd_dma(i,q))
    h_flag(2, GT-5.6, GT-4.2)
    for i in range(c["hd"]):
        for mi in range(2): at(GT-2.8+1.0*i+0.5*mi, h_load(i,mi))
    for j in range(4): at(GT-1.2+0.2*j, lambda j=j: d_read(0,j))
    epoch(33.5, 37.5, kv_landed(5))
    kv_fetch(6, 0, 37.7)
    epoch(41.5, 45.0, kv_landed(6))
    tl = GT + (7-c["hd"])*4*(64-GT)/56
    kv_fetch(7, 0, 46.2)
    h_flag(3, tl-1.8, tl-0.4)
    epoch(50.0, 53.5, kv_landed(7))

    rK(0); rV(0,0)
    for i in range(NWB): wread(i)
    QK(0); rK(1)
    gi = 0
    ORD = {0:["PV2","QK","PV1"], 1:["PV2","QK","G","PV1"], 2:["PV2","QK","G","PV1","G"], 3:["PV2","G","QK","G","PV1","G"], 4:["PV2","G","QK","G","PV1","G","G"]}
    for t in range(64):
        if t % 8 in c["prio"]:
            curprio[0] = c["prio"][t%8]; e(f"s_setprio {curprio[0]}")
        if c["stamps"] and t in (6,8,16,36,48): stamp()
        S = Sb(t); Sp = Sb(t+1)
        b = "e c e e c e e c e e c e e c e e c e e c e e c e".split()
        cost = [8 if x == "e" else 4 for x in b]
        cum = [sum(cost[:i]) for i in range(len(b)+1)]
        ms = ORD[ng[t]]; n = len(ms); posn = {}
        for x, m in enumerate(ms):
            target = (cum[4] + 160*x/n) % 160
            p = min(range(len(b)), key=lambda i: abs(cum[i]-target))
            if m == "PV1": p = max(p, 16)
            posn.setdefault(p, []).append(m)
        ei = 0; ci = -1
        for p, tok in enumerate(b):
            now[0] = t + cum[p]/160
            for m in posn.get(p, []):
                if m == "PV2":
                    if t > 0: PV(t-1, 1)
                    rV(t, 1)
                elif m == "QK":
                    if t < 63: QK(t+1)
                    rK(t+2)
                elif m == "PV1":
                    PV(t, 0); rV(t+1, 0)
                else:
                    gops[gi](); gi += 1
                if side and side[0][0] <= now[0]:
                    side.pop(0)[1]()
            while vside and vside[0][0] <= now[0]:
                vside.pop(0)[2]()
            if tok == "e":
                e(f"v_exp_f32 v{S+ei}, v{S+ei}"); ei += 1
            else:
                if ci < 0:
                    if t > 0: e(f"v_cvt_pk_bf16_f32 v{Sp+7}, v{Sp+14}, v{Sp+15}")
                else: e(f"v_cvt_pk_bf16_f32 v{S+ci}, v{S+2*ci}, v{S+2*ci+1}")
                ci += 1
    assert not side and not vside and gi == len(gops), (side, vside)
    S = Sb(63)
    e(f"v_cvt_pk_bf16_f32 v{S+7}, v{S+14}, v{S+15}")
    PV(63, 1)
    e("s_setprio 0")
    stamp()
    e("s_nop 15")
    e("s_mov_b32 exec_lo, 0"); e(f"v_mov_b32 v{O+8}, v{O+12}"); e("s_mov_b32 exec_lo, -1")
    lo, hi = (2.0**-40, 2.0**40) if not c["force_fb"] else (2.0**40, 2.0**41)
    e(f"v_cmp_le_f32 vcc, {hex(f2u(lo))}, v{O+8}"); e(f"s_mov_b64 s[26:27], vcc")
    e(f"v_cmp_ge_f32 vcc, {hex(f2u(hi))}, v{O+8}"); e(f"s_and_b64 vcc, vcc, s[26:27]")
    e("s_cmp_eq_u64 vcc, -1"); e("s_cbranch_scc0 L_fallback")
    k.raw("L_fb_back:")
    e(f"v_rcp_f32 v{T0}, v{O+8}"); e(f"v_mul_f32 v{T0}, v{T0}, v{VG}")
    for i in range(8): e(f"v_mul_f32 v{O+i}, v{O+i}, v{T0}")
    for i in range(4): e(f"v_cvt_pk_bf16_f32 v{O+i}, v{O+2*i}, v{O+2*i+1}")
    e(f"s_lshl_b32 s{sT2}, s{sH}, 10"); e(f"s_add_u32 s{sT2}, s{sT2}, s{sHOS}"); e(f"s_add_u32 s{sT2}, s{sT2}, {112*1024}")
    k.vm("o", f"buffer_store_dwordx4 {vr(O,4)}, v{AK}, {sr(sWS,4)}, s{sT2} offen sc1")
    for i in range(14,18):
        for j in range(4): d_read(i, j, vr(GA+8*(i-14)+2*j, 2))
    k.wait(vm=["o"]); flag_store(4)
    RW = SA; RR = SA+4
    e(f"v_and_b32 v{T0}, 31, v0"); e(f"v_lshlrev_b32 v{RW+8}, 8, v{T0}"); e(f"s_lshl_b32 s3, s{sW}, 14"); e(f"v_add_u32 v{RW+8}, s3, v{RW+8}")
    e(f"v_and_b32 v{T0}, 7, v0"); e(f"v_lshrrev_b32 v{RW+9}, 5, v0"); e(f"v_xor_b32 v{T0}, v{T0}, v{RW+9}")
    for j in range(4):
        e(f"v_xor_b32 v{RW+9}, {2*j}, v{T0}"); e(f"v_lshl_add_u32 v{RW+j}, v{RW+9}, 4, v{RW+8}")
    e(f"v_lshrrev_b32 v{RW+8}, 3, v0"); e(f"v_and_b32 v{T0}, 7, v0"); e(f"v_lshlrev_b32 v{T0}, 1, v{T0}"); e(f"v_xor_b32 v{T0}, v{T0}, v{RW+8}")
    e(f"v_lshlrev_b32 v{T0}, 4, v{T0}"); e(f"v_lshl_add_u32 v{RR}, v{RW+8}, 8, v{T0}"); e(f"s_lshl_b32 s3, s{sW}, 11"); e(f"v_add_u32 v{RR}, s3, v{RR}")
    e(f"v_xor_b32 v{RR+1}, 16, v{RR}"); e(f"v_add_u32 v{RR+2}, 65536, v{RR}"); e(f"v_add_u32 v{RR+3}, 65536, v{RR+1}")
    e(f"v_and_b32 v{T0}, 0x70, v{AK}"); e(f"v_lshl_add_u32 v{RW+10}, v{RW+8}, 10, v{T0}")
    e(f"s_lshl_b32 s{sXO}, s{sMT}, 16"); e(f"s_lshl_b32 s3, s{sW}, 13"); e(f"s_add_u32 s{sXO}, s{sXO}, s3"); e(f"s_lshl_b32 s3, s{sNT}, 7"); e(f"s_add_u32 s{sXO}, s{sXO}, s3")
    e(f"v_and_b32 v{VFL}, 7, v0"); e(f"v_lshlrev_b32 v{VFL}, 10, v{VFL}")
    e(f"s_lshl_b32 s3, s{sW}, 7"); e(f"s_lshl_b32 s{sFK}, s{sMT}, 13"); e(f"s_add_u32 s{sFK}, s{sFK}, s3")
    k.wait_all(lds=True, vm=False)
    e("s_barrier")
    stamp()
    h_flag(4, None, None)
    stamp()
    e(f"s_mul_i32 s{sHOL}, s{sMT}, {2*HO_M}"); e(f"s_lshl_b32 s3, s{sW}, 10"); e(f"s_add_u32 s{sHOL}, s{sHOL}, s3")
    for i in range(4):
        for mi in range(2):
            so = soffs((sHOL, WS_HO + (112+8*i)*1024 + mi*HO_M))
            k.vm(("ol",i), f"buffer_load_dwordx4 {ar(8*i+4*mi,4)}, v{AK}, {sr(sWS,4)}, {so} offen sc1")
    for i in range(4):
        k.wait(vm=[("ol",i)])
        for j in range(4):
            ni, mi = j>>1, j&1
            acc = ar(64+16*(2*mi+ni),16)
            e(f"v_mfma_f32_32x32x16_bf16 {acc}, {vr(GA+8*i+4*ni,4)}, {ar(8*i+4*mi,4)}, {acc}")
    for jj in range(4):
        ni, mi = jj>>1, jj&1
        for j in range(4):
            k.lds("rw", f"ds_write_b128 v{RW+j}, {ar(64+16*(2*mi+ni)+4*j,4)} offset:{mi*8192+ni*128}")
    k.wait_all(lds=True, vm=False)
    e("s_barrier")
    stamp()
    RD = 64
    for p in range(8):
        for x in range(2):
            k.lds(("rr",p), f"ds_read_b128 {vr(RD+8*p+4*x,4)}, v{RR+x+2*(p>>2)} offset:{(p&3)*16384}")
    for p in range(1,8):
        k.wait(lds=[("rr",p)])
        for i in range(8): e(f"v_add_f32 v{RD+i}, v{RD+i}, v{RD+8*p+i}")
    for i in range(4): e(f"v_cvt_pk_bf16_f32 v{RD+i}, v{RD+2*i}, v{RD+2*i+1}")
    k.vm("out", f"buffer_store_dwordx4 {vr(RD,4)}, v{RW+10}, {sr(sOUT,4)}, s{sXO} offen")
    if c["stamps"]:
        k.wait_all(); stamp("end")
        e("s_memrealtime s[26:27]"); e("s_waitcnt lgkmcnt(0)")
        e(f"s_lshl_b32 s3, s2, 3"); e(f"s_add_u32 s3, s3, s{sW}"); e("s_lshl_b32 s3, s3, 7"); e(f"s_add_u32 s3, s3, {WS_ST}")
        vals = ["s98","s26","s100"] + [f"s{sST+i}" for i in range(nst[0])]
        for i, v in enumerate(vals):
            e(f"v_mov_b32 v{T0}, {v}"); e(f"buffer_store_dword v{T0}, off, {sr(sWS,4)}, s3 offset:{4*i}")
    k.raw("L_end:")
    e("s_endpgm")
    f = K(); g = f.e
    f.raw("L_fallback:")
    g("s_waitcnt vmcnt(0) lgkmcnt(0)")
    MX = T0; CN = SB
    g(f"v_mov_b32 v{MX}, 0xff800000"); g(f"s_mov_b32 s{sT2}, s{sKVH}"); g(f"s_mov_b32 s{sCNT}, 64")
    f.raw("L_fb1:")
    g(f"buffer_load_dwordx4 {vr(KF,4)}, v{AK}, {sr(sWS,4)}, s{sT2} offen sc1"); g("s_waitcnt vmcnt(0)")
    g(f"v_mfma_f32_32x32x16_bf16 {vr(SA,16)}, {vr(KF,4)}, {vr(Q,4)}, 0")
    for i in range(8): g(f"v_max3_f32 v{MX}, v{MX}, v{SA+2*i}, v{SA+2*i+1}")
    g(f"s_add_u32 s{sT2}, s{sT2}, 2048"); g(f"s_sub_u32 s{sCNT}, s{sCNT}, 1"); g(f"s_cmp_lg_u32 s{sCNT}, 0"); g("s_cbranch_scc1 L_fb1")
    g(f"v_mov_b32 v{T1}, v{MX}"); g(f"v_permlane32_swap_b32 v{MX}, v{T1}"); g(f"v_max_f32 v{MX}, v{MX}, v{T1}")
    for i in range(16): g(f"v_sub_f32 v{CN+i}, 0, v{MX}")
    for i in range(16): g(f"v_mov_b32 v{O+i}, 0")
    for i in range(8): g(f"v_mov_b32 v{VF+i}, 0x3f803f80")
    g(f"s_mov_b32 s{sT2}, s{sKVH}"); g(f"s_mov_b32 s{sCNT}, 64")
    f.raw("L_fb2:")
    g(f"buffer_load_dwordx4 {vr(KF,4)}, v{AK}, {sr(sWS,4)}, s{sT2} offen sc1")
    g("s_mov_b32 exec_lo, 0xffff"); g("s_mov_b32 exec_hi, 0xffff")
    g(f"buffer_load_dwordx4 {vr(VF,4)}, v{AV0}, {sr(sWS,4)}, s{sT2} offen sc1")
    g(f"buffer_load_dwordx4 {vr(VF+4,4)}, v{AV1}, {sr(sWS,4)}, s{sT2} offen sc1")
    g("s_mov_b64 exec, -1"); g("s_waitcnt vmcnt(0)")
    g(f"v_mfma_f32_32x32x16_bf16 {vr(SA,16)}, {vr(KF,4)}, {vr(Q,4)}, {vr(CN,16)}")
    for i in range(16): g(f"v_exp_f32 v{SA+i}, v{SA+i}")
    for i in range(8): g(f"v_cvt_pk_bf16_f32 v{SA+i}, v{SA+2*i}, v{SA+2*i+1}")
    g(f"v_mfma_f32_32x32x16_bf16 {vr(O,16)}, {vr(VF,4)}, {vr(SA,4)}, {vr(O,16)}")
    g(f"v_mfma_f32_32x32x16_bf16 {vr(O,16)}, {vr(VF+4,4)}, {vr(SA+4,4)}, {vr(O,16)}")
    g(f"s_add_u32 s{sT2}, s{sT2}, 2048"); g(f"s_sub_u32 s{sCNT}, s{sCNT}, 1"); g(f"s_cmp_lg_u32 s{sCNT}, 0"); g("s_cbranch_scc1 L_fb2")
    g("s_nop 15"); g("s_branch L_fb_back")

    hdr = open("cdna_kernels/%s.s.ref" % NAME).read().split("; Override launch geometry")[0]
    out = hdr + f"; @launch grid=(256,1,1) block=(512,1,1) lds={LDS_BYTES}\n"
    out += f""".amdgcn_target "amdgcn-amd-amdhsa--gfx950"
.text
.globl {NAME}_kernel
.p2align 8
.type {NAME}_kernel,@function
{NAME}_kernel:
"""
    out += k.text() + "\n" + "\n".join(k.ool) + "\n" + f.text() + f"""
.section .rodata,"a"
.p2align 6
.amdhsa_kernel {NAME}_kernel
  .amdhsa_next_free_vgpr 256
  .amdhsa_next_free_sgpr 102
  .amdhsa_accum_offset 128
  .amdhsa_group_segment_fixed_size 0
  .amdhsa_kernarg_size 88
  .amdhsa_user_sgpr_count 2
  .amdhsa_user_sgpr_kernarg_segment_ptr 1
  .amdhsa_system_sgpr_workgroup_id_x 1
.end_amdhsa_kernel
"""
    sys.stderr.write(f"instrs {len(k.ins)} nops {k.nops} ng {ng}\n")
    return out

if __name__ == "__main__":
    import json
    cfg = json.loads(sys.argv[2]) if len(sys.argv) > 2 else {}
    if "prio" in cfg: cfg["prio"] = {int(a): b for a, b in cfg["prio"].items()}
    open(sys.argv[1], "w").write(gen(cfg))
```

```python
import re

TRANS = ("v_exp_f32","v_rcp_f32","v_log_f32","v_rsq_f32","v_sqrt_f32")

def regs_of(tok):
    tok = tok.strip()
    tok = tok.lstrip("-")
    if tok.startswith("abs(") : tok = tok[4:-1]
    if tok.startswith("|"): tok = tok.strip("|")
    m = re.fullmatch(r"([vas])(\d+)", tok)
    if m: return [(m.group(1), int(m.group(2)))]
    m = re.fullmatch(r"([vas])\[(\d+):(\d+)\]", tok)
    if m: return [(m.group(1), i) for i in range(int(m.group(2)), int(m.group(3))+1)]
    if tok == "vcc": return [("s","vcc")]
    if tok in ("vcc_lo","vcc_hi"): return [("s","vcc")]
    if tok == "m0": return [("s","m0")]
    if tok in ("exec","exec_lo","exec_hi"): return [("s","exec")]
    return []

class Ins:
    def __init__(s, text):
        s.text = text
        t = text.split(";")[0].strip()
        s.label = t.endswith(":")
        s.directive = t.startswith(".")
        s.op = t.split()[0] if t else ""
        rest = t[len(s.op):].strip()
        ops = [x.strip() for x in rest.split(",")] if rest else []
        mods = ""
        if ops:
            parts = ops[-1].split()
            ops[-1] = parts[0]; mods = " ".join(parts[1:])
        s.ops = ops; s.mods = mods
        s.w = []; s.r = []; s.c = []
        op = s.op
        s.kind = "other"
        s.states = 1
        if s.label or s.directive or not op:
            s.kind = "none"; s.states = 0; return
        if op == "s_nop":
            s.kind = "nop"; s.states = int(ops[0]) + 1; return
        if op.startswith("v_smfmac"):
            s.kind = "mfma"; s.passes = 8
            s.w = regs_of(ops[0]); s.r = regs_of(ops[1]) + regs_of(ops[2]) + regs_of(ops[3]); s.c = regs_of(ops[0])
        elif op.startswith("v_mfma"):
            s.kind = "mfma"
            s.passes = 2 if "4x4x4" in op else (8 if "32x32x16" in op else 4)
            s.w = regs_of(ops[0]); s.r = regs_of(ops[1]) + regs_of(ops[2]); s.c = regs_of(ops[3])
        elif op.startswith("v_"):
            s.kind = "valu"
            s.trans = op.replace("_e32","").replace("_e64","") in TRANS
            if op.startswith("v_permlane") and "swap" in op:
                s.w = regs_of(ops[0]) + regs_of(ops[1]); s.r = list(s.w)
            else:
                s.w = regs_of(ops[0])
                for o in ops[1:]: s.r += regs_of(o)
                if op.startswith(("v_fmac","v_dot2c")) : s.r += regs_of(ops[0])
        elif op.startswith("ds_"):
            s.kind = "ds"
            if op.startswith("ds_read"):
                s.w = regs_of(ops[0]); s.r = regs_of(ops[1])
            else:
                for o in ops: s.r += regs_of(o)
                s.data = regs_of(ops[1]) if op.endswith("b128") else []
        elif op.startswith("buffer_") or op.startswith("global_"):
            s.kind = "vmem"
            s.dma = " lds" in (" " + mods)
            s.data = []
            if op.startswith("buffer_load") and not s.dma:
                s.w = regs_of(ops[0])
                for o in ops[1:]: s.r += regs_of(o)
            elif op.startswith("global_load") and not s.dma:
                s.w = regs_of(ops[0])
                for o in ops[1:]: s.r += regs_of(o)
            else:
                for o in ops: s.r += regs_of(o)
                if s.dma: s.r += [("s","m0")]
                if op == "buffer_store_dwordx4": s.data = regs_of(ops[0])
        elif op.startswith("s_"):
            s.kind = "salu"
            if op.startswith(("s_cmp","s_bitcmp","s_cbranch","s_branch","s_waitcnt","s_barrier","s_setprio","s_endpgm")):
                for o in ops: s.r += regs_of(o)
            else:
                if ops: s.w = regs_of(ops[0])
                for o in ops[1:]: s.r += regs_of(o)

def need_states(p, c):
    n = 0
    pw = set(p.w); cr = set(c.r); cw = set(c.w); cc = set(c.c)
    vw = {x for x in pw if x[0] in "va"}
    sw = {x for x in pw if x[0] == "s"}
    if p.kind == "valu":
        if c.kind == "mfma" and vw & (cr | cc): n = max(n, 2)
        if c.kind == "valu":
            if p.trans and vw & cr: n = max(n, 1)
            if p.op.startswith("v_dot") and vw & (cr | cw):
                same_c = c.op == p.op and not (vw & set(regs_of(c.ops[1]) + regs_of(c.ops[2])))
                if not same_c: n = max(n, 3)
            if c.op.startswith(("v_readfirstlane","v_readlane")) and vw & cr: n = max(n, 1)
            if c.op.startswith("v_permlane") and vw & cr: n = max(n, 2)
            if "dpp" in c.text and vw & cr: n = max(n, 2)
            if sw & cr: n = max(n, 2)
        if c.kind == "vmem" and sw & cr: n = max(n, 5)
        if c.kind == "salu" and sw & cr: n = max(n, 1)
        if p.trans and c.kind in ("ds","vmem") and vw & cr: n = max(n, 1)
    if p.kind == "mfma":
        big = {2:5, 4:8, 8:12}[p.passes]
        if c.kind in ("valu","ds","vmem") and vw & (cr | cw): n = max(n, big)
        if c.kind == "mfma":
            if vw & cr: n = max(n, big)
            if vw & cc:
                if cc == vw and c.passes == p.passes: n = max(n, 2 if p.passes == 2 else 0)
                else: n = max(n, {2:4, 4:6, 8:10}[p.passes])
            elif vw & cw and c.passes != p.passes: n = max(n, big)
        if c.kind == "valu" and set(p.c) & cw: n = max(n, {2:1, 4:3, 8:7}[p.passes])
    if p.kind == "salu" and ("s","m0") in pw and c.kind == "vmem" and c.dma: n = max(n, 1)
    if p.kind in ("vmem","ds") and getattr(p, "data", None):
        if set(p.data) & cw: n = max(n, 2)
    return n

class K:
    def __init__(s):
        s.ins = []
        s.lq = []
        s.vq = []
        s.have = set()
        s.nops = 0
        s.ool = []
        s.verify = True
        s.nl = 0
    def label(s, base):
        s.nl += 1
        return f"L_{base}_{s.nl}"
    def raw(s, text):
        s.ins.append(Ins(text))
    def e(s, text):
        for line in text.split("\n"):
            line = line.strip()
            if not line: continue
            s._emit(Ins(line))
    def _emit(s, c):
        if c.kind not in ("none","nop"):
            dist = 0; need = 0
            for p in reversed(s.ins):
                if dist >= 13: break
                if p.kind not in ("none","nop"):
                    k = need_states(p, c)
                    if k - dist > need: need = k - dist
                dist += p.states
            if need > 0:
                s.ins.append(Ins(f"s_nop {need-1}")); s.nops += need
            if s.verify:
                touched = set(c.r) | set(c.w) | set(c.c)
                for q, nm in ((s.lq,"lgkm"),(s.vq,"vm")):
                    for tag, regs in q:
                        if touched & regs:
                            raise Exception(f"pending {nm} load {tag} touches regs of: {c.text}")
        s.ins.append(c)
    def lds(s, tag, text):
        c = Ins(text); s._emit(c); s.lq.append((tag, set(c.w)))
    def vm(s, tag, text):
        c = Ins(text); s._emit(c); s.vq.append((tag, set(c.w)))
    def _need(s, q, tags):
        idx = [i for i,(t,_) in enumerate(q) if t in tags]
        if not idx: return None
        last = max(idx)
        return len(q) - 1 - last
    def wait(s, lds=(), vm=()):
        parts = []
        n = s._need(s.vq, vm)
        if n is not None:
            n = min(n, 63)
            parts.append(f"vmcnt({n})"); s.vq = s.vq[len(s.vq)-n:] if n else []
        n = s._need(s.lq, lds)
        if n is not None:
            n = min(n, 15)
            parts.append(f"lgkmcnt({n})"); s.lq = s.lq[len(s.lq)-n:] if n else []
        if parts: s.e("s_waitcnt " + " ".join(parts))
    def wait_all(s, lds=True, vm=True):
        parts = []
        if vm: parts.append("vmcnt(0)"); s.vq = []
        if lds: parts.append("lgkmcnt(0)"); s.lq = []
        s.e("s_waitcnt " + " ".join(parts))
    def provide(s, *tags): s.have.update(tags)
    def require(s, *tags):
        for t in tags:
            if t not in s.have: raise Exception(f"order violation: {t} not provided yet")
    def text(s):
        out = []
        for i in s.ins:
            out.append(i.text if (i.label or i.directive) else "    " + i.text)
        return "\n".join(out)

def vr(b, n=1, p="v"):
    return f"{p}{b}" if n == 1 else f"{p}[{b}:{b+n-1}]"
def ar(b, n=1): return vr(128+b, n, "v")
def sr(b, n=1): return vr(b, n, "s")
```

```python
import sys, math, struct
from asmlib import *

NAME = "gated_mix__mha_block__glu_gated_glu__prompt"
LOG2E = 1.4426950408889634
def f2u(x): return struct.unpack("<I", struct.pack("<f", x))[0]

KVT = 2064; KVS = 8*KVT
GW_L = 49664; PROG = 50688; RA = 51200; WV = 12288
LDS_BYTES = RA + 8*WV
WS_F = 0; WS_KV = 0x100000; WS_HO = 0x500000; HO_M = 144*1024; WS_ST = 0x1000000; WS_SZ = 0x2000000
AK,AV0,AV1,AWA,AWB,VC,VG,PW,PR,T0,T1,VWG,VFL,VD0,VD1 = range(1,16)
Q=16; KF=20; VF=24; SA=32; SB=48; O=64; GA=80; GB=96; WB=112; NWB=3; TT=124
sX,sWQ,sWO,sWG,sWU,sWD,sGW,sOUT,sDBG,sWS,sWSH,sDBL = range(28,76,4)
sW,sH,sR,sROT,sMT,sNT,sWB,sXO,sWQO,sKVO,sKVH,sFO,sFK,sHOS,sHOL,sWGO,sWDO,sWOO,sDONE,sT,sT2,sCNT = range(76,98)
sFS = 25
sST = 4

IDX = 0; JUNK = GW_L
DEF = dict(stamps=False, mapping="C", hd=2, spin=1<<20, rot="h2r", seg=[3,11,8,11,8], pf=True,
           prio={0:3,3:2,6:1,7:0}, force_fb=False)

def gen(cfg):
    c = dict(DEF); c.update(cfg)
    k = K(); e = k.e
    nst = [0]
    locks = set()
    def lock(x):
        assert x not in locks, x
        locks.add(x)
    def unlock(x): locks.remove(x)
    npt = [0]
    def stamp(grp="main"):
        if grp in ("main","end"):
            if c.get("diag_pad") == npt[0]:
                k.wait_all(lds=True, vm=False)
                k.raw("L_pad:"); e("s_memrealtime s[26:27]"); e("s_waitcnt lgkmcnt(0)"); e("s_sub_u32 s26, s26, s98"); e("s_cmp_lt_u32 s26, 6000"); e("s_cbranch_scc1 L_pad")
            npt[0] += 1
        if not c["stamps"]: return
        if grp not in c.get("stgrp","main").split(",") and grp != "end": return
        i = nst[0]; nst[0] += 1
        assert i < 16
        e(("s_memrealtime" if c["stamps"] == "rt" else "s_memtime") + " s[26:27] ; STAMP"); k.wait_all(lds=True, vm=False)
        e(f"s_mov_b32 s{sST+i}, s26")
    early = []
    def estamp():
        if not c["stamps"] or "s1" not in c.get("stgrp","").split(","): return
        r_ = [10,11,0,1][len(early)]; early.append(r_)
        e(("s_memrealtime" if c["stamps"] == "rt" else "s_memtime") + " s[26:27] ; STAMP"); e("s_waitcnt lgkmcnt(0)"); e(f"s_mov_b32 s{r_}, s26")
    def eflush():
        for r_ in early:
            e(f"s_mov_b32 s{sST+nst[0]}, s{r_}"); nst[0] += 1
    def srd(s, p, n, gate=None):
        e(f"s_mov_b32 s{s}, s{p}"); e(f"s_and_b32 s{s+1}, s{p+1}, 0xffff")
        if gate is None: e(f"s_mov_b32 s{s+2}, {n}")
        else: e(f"s_cselect_b32 s{s+2}, {n}, 0")
        e(f"s_mov_b32 s{s+3}, 0x20000")
    def dma(tag, voff, rs, soff, ldsbase, ldsoff, sc1=False):
        if ldsbase is None: e(f"s_mov_b32 m0, {ldsoff}")
        else: e(f"s_add_u32 m0, s{ldsbase}, {ldsoff}")
        so = soffs(soff)
        k.vm(tag, f"buffer_load_dwordx4 v{voff}, {sr(rs,4)}, {so} offen {'sc1 ' if sc1 else ''}lds")
    def soffs(soff):
        s, imm = soff
        if imm == 0: return f"s{s}"
        e(f"s_add_u32 s{sT}, s{s}, {imm}")
        return f"s{sT}"

    e("s_cmp_ge_u32 s2, 256"); e("s_cbranch_scc1 L_end")
    e("s_load_dwordx16 s[4:19], s[0:1], 0")
    e("s_load_dwordx4 s[20:23], s[0:1], 64")
    e("s_load_dwordx2 s[24:25], s[0:1], 80")
    if c["stamps"] or "diag_pad" in c:
        e("s_memrealtime s[98:99]"); e(("s_memrealtime" if c["stamps"] == "rt" else "s_memtime") + " s[100:101]")
    e(f"v_lshrrev_b32 v{T0}, 6, v0")
    e(f"v_and_b32 v0, 63, v0")
    e(f"v_readfirstlane_b32 s{sW}, v{T0}")
    e(f"s_and_b32 s{sT}, s2, 7"); e(f"s_lshr_b32 s{sT2}, s2, 3")
    if c["mapping"] == "C":
        e(f"s_and_b32 s{sR}, s{sT}, 1"); e(f"s_lshl_b32 s{sR}, s{sR}, 2"); e(f"s_lshr_b32 s3, s{sT2}, 3"); e(f"s_add_u32 s{sR}, s{sR}, s3")
        e(f"s_lshr_b32 s{sH}, s{sT}, 1"); e(f"s_lshl_b32 s{sH}, s{sH}, 3"); e(f"s_and_b32 s3, s{sT2}, 7"); e(f"s_add_u32 s{sH}, s{sH}, s3")
    elif c["mapping"] == "A":
        e(f"s_mov_b32 s{sR}, s{sT}"); e(f"s_mov_b32 s{sH}, s{sT2}")
    elif c["mapping"] == "D":
        e(f"s_and_b32 s{sR}, s{sT}, 3"); e(f"s_lshl_b32 s{sR}, s{sR}, 1"); e(f"s_lshr_b32 s3, s{sT2}, 4"); e(f"s_add_u32 s{sR}, s{sR}, s3")
        e(f"s_lshr_b32 s{sH}, s{sT}, 2"); e(f"s_lshl_b32 s{sH}, s{sH}, 4"); e(f"s_and_b32 s3, s{sT2}, 15"); e(f"s_add_u32 s{sH}, s{sH}, s3")
    e(f"s_lshl_b32 s3, s{sR}, 1"); e(f"s_add_u32 s3, s3, s{sH}")
    if c["rot"] == "h2r": e(f"s_and_b32 s{sROT}, s3, 7")
    elif c["rot"] == "none": e(f"s_mov_b32 s{sROT}, 0")
    elif c["rot"] == "p2": e(f"s_and_b32 s3, s{sH}, 1"); e(f"s_lshl_b32 s{sROT}, s3, 2")
    elif c["rot"] == "p4": e(f"s_and_b32 s3, s{sH}, 3"); e(f"s_lshl_b32 s{sROT}, s3, 1")
    elif c["rot"] == "xr":
        e(f"s_lshr_b32 s{sROT}, s{sT}, 1"); e(f"s_and_b32 s3, s{sT}, 1"); e("s_lshl_b32 s3, s3, 1"); e(f"s_add_u32 s{sROT}, s{sROT}, s3")
        e(f"s_and_b32 s3, s{sH}, 1"); e("s_lshl_b32 s3, s3, 2"); e(f"s_add_u32 s{sROT}, s{sROT}, s3"); e(f"s_and_b32 s{sROT}, s{sROT}, 7")
    elif c["rot"] == "x1":
        e(f"s_and_b32 s{sROT}, s{sT}, 6"); e(f"s_and_b32 s3, s{sT}, 1"); e("s_lshl_b32 s3, s3, 2"); e(f"s_add_u32 s{sROT}, s{sROT}, s3"); e(f"s_and_b32 s{sROT}, s{sROT}, 7")
    elif c["rot"] == "x4":
        e(f"s_lshr_b32 s{sROT}, s{sT}, 1"); e(f"s_and_b32 s{sROT}, s{sROT}, 1"); e(f"s_and_b32 s3, s{sH}, 3"); e("s_lshl_b32 s3, s3, 1"); e(f"s_add_u32 s{sROT}, s{sROT}, s3")
    elif c["rot"] == "a2": e(f"s_and_b32 s{sROT}, s{sH}, 1")
    elif c["rot"] == "a4": e(f"s_and_b32 s{sROT}, s{sH}, 3")
    e(f"s_lshl_b32 s{sMT}, s{sT}, 2"); e(f"s_lshr_b32 s3, s{sT2}, 3"); e(f"s_add_u32 s{sMT}, s{sMT}, s3")
    e(f"s_and_b32 s{sNT}, s{sT2}, 7")
    X0=64; XR=68; T0R=72; T1R=73; GWR=74; T0D=75; T1D=76; GWD=77; U0=78; U1=79
    ln = 0
    e(f"v_lshlrev_b32 v{AK}, 4, v0")
    e(f"v_lshrrev_b32 v{U0}, 2, v0"); e(f"v_mul_u32_u24 v{T0D}, 3072, v{U0}")
    e(f"v_mul_u32_u24 v{VWG}, 3584, v{U0}")
    e(f"v_and_b32 v{U0}, 3, v0"); e(f"v_lshl_add_u32 v{VWG}, v{U0}, 4, v{VWG}")
    e(f"v_and_b32 v{U0}, 2, v0"); e(f"v_lshl_add_u32 v{T0D}, v{U0}, 9, v{T0D}")
    e(f"v_and_b32 v{U1}, 1, v0"); e(f"v_lshl_add_u32 v{T0D}, v{U1}, 4, v{T0D}")
    e(f"v_lshrrev_b32 v{U0}, 1, v0"); e(f"v_mul_u32_u24 v{T1D}, 3072, v{U0}"); e(f"v_lshl_add_u32 v{T1D}, v{U1}, 4, v{T1D}")
    e(f"v_lshrrev_b32 v{U0}, 4, v0"); e(f"v_and_b32 v{U1}, 7, v0"); e(f"v_xor_b32 v{U0}, v{U0}, v{U1}")
    e(f"v_lshlrev_b32 v{U0}, 4, v{U0}"); e(f"v_lshrrev_b32 v{U1}, 3, v0"); e(f"v_lshl_add_u32 v{X0}, v{U1}, 10, v{U0}")
    e(f"v_xor_b32 v{X0+1}, 64, v{X0}"); e(f"v_add_u32 v{X0+1}, 8192, v{X0+1}")
    e(f"v_add_u32 v{X0+2}, 16384, v{X0}"); e(f"v_add_u32 v{X0+3}, 16384, v{X0+1}")
    e(f"s_mul_i32 s{sWB}, s{sW}, {WV}"); e(f"s_add_u32 s{sWB}, s{sWB}, {RA}")
    e(f"s_lshl_b32 s{sT}, s{sR}, 3"); e(f"s_add_u32 s{sT}, s{sT}, s{sW}")
    e(f"s_lshl_b32 s{sXO}, s{sT}, 15")
    e(f"s_lshl_b32 s{sFO}, s{sT}, 12"); e(f"s_lshl_b32 s3, s{sH}, 7"); e(f"s_add_u32 s{sFO}, s{sFO}, s3")
    e(f"s_lshl_b32 s{sFK}, s{sW}, 12"); e(f"s_add_u32 s{sFK}, s{sFK}, s3")
    e(f"s_mul_i32 s{sHOS}, s{sT}, {HO_M}"); e(f"s_add_u32 s{sHOS}, s{sHOS}, {WS_HO}")
    e(f"s_lshl_b32 s{sKVH}, s{sH}, 17"); e(f"s_add_u32 s{sKVH}, s{sKVH}, {WS_KV}")
    e(f"s_lshl_b32 s{sKVO}, s{sT}, 11"); e(f"s_add_u32 s{sKVO}, s{sKVO}, s{sKVH}")
    e("s_waitcnt lgkmcnt(0)")
    estamp()
    srd(sWQ, 6, 512*1536*2); srd(sX, 4, 2048*512*2); srd(sGW, 18, 1024); srd(sWS, 24, WS_SZ)
    e(f"s_lshr_b32 s3, s2, 5"); e(f"s_or_b32 s3, s3, s{sW}"); e("s_cmp_eq_u32 s3, 0")
    e(f"s_cselect_b32 s{sDBL+2}, 256, 0")
    e("s_cbranch_scc0 L_nolead")
    e(f"v_mov_b32 v{T0}, 0"); e(f"v_lshlrev_b32 v{T1}, 7, v0"); e("s_lshl_b32 s3, s2, 13")
    e(f"buffer_store_dword v{T0}, v{T1}, {sr(sWS,4)}, s3 offen sc1")
    k.raw("L_nolead:")
    def wq_dma(g):
        def a():
            e(f"s_lshl_b32 s3, s{sROT}, 2"); e(f"s_add_u32 s3, s3, s{sW}"); e(f"s_add_u32 s3, s3, {8*g}"); e("s_and_b32 s3, s3, 31")
            e(f"s_mul_i32 s3, s3, {16*3072}"); e(f"s_lshl_b32 s{sT2}, s{sH}, 5"); e(f"s_add_u32 s{sWQO}, s3, s{sT2}")
            e(f"s_lshl_b32 s{sT2}, s{sW}, 10")
            dma(("wq",g), T0D, sWQ, (sWQO,0), sT2, 12288*g)
        def b():
            e(f"s_lshl_b32 s{sT2}, s{sW}, 9")
            e("s_mov_b32 exec_hi, 0")
            dma(("wq",g), T1D, sWQ, (sWQO,2048), sT2, 12288*g+8192)
            e("s_mov_b32 exec_hi, -1")
        return [a,b]
    def x_dma(j):
        def f(i):
            def g_():
                if i == 0:
                    e(f"s_add_u32 s3, s{sROT}, {j}"); e("s_and_b32 s3, s3, 7"); e("s_lshl_b32 s3, s3, 7"); e(f"s_add_u32 s{sCNT}, s3, s{sXO}")
                dma(("x",j), X0+i, sX, (sCNT,0), sWB, (j%3)*4096+i*1024)
            return g_
        return [f(i) for i in range(4)]
    def gw_dma():
        e(f"s_add_u32 s3, s{sROT}, s{sW}"); e("s_and_b32 s3, s3, 7"); e("s_lshl_b32 s3, s3, 7"); e(f"s_lshl_b32 s{sT2}, s{sW}, 7")
        e("s_mov_b64 exec, 0xff")
        dma(("wq",0), AK, sGW, (3,0), sT2, GW_L)
        e("s_mov_b64 exec, -1")
    for f_ in x_dma(0) + [estamp] + wq_dma(0) + [gw_dma, estamp]: f_()
    X1 = x_dma(1)
    e(f"s_mov_b32 s{sDBL}, s22"); e(f"s_and_b32 s{sDBL+1}, s23, 0xffff"); e(f"s_mov_b32 s{sDBL+3}, 0x20000")
    srd(sDBG, 22, 256); srd(sOUT, 20, 2048*512*2); srd(sWO, 8, 512*512*2); srd(sWD, 16, 1792*512*2)
    for s_, p_, n_ in ((sWG,12,512*1792*2),(sWU,14,512*1792*2),(sWSH,24,WS_SZ)):
        e(f"s_mov_b32 s{s_}, s{p_}"); e(f"s_and_b32 s{s_+1}, s{p_+1}, 0xffff"); e(f"s_mov_b32 s{s_+3}, 0x20000")
        e(f"s_and_b32 s3, s{sH}, 7"); e(f"s_cmp_lt_u32 s3, 7"); e(f"s_cselect_b32 s{s_+2}, {n_}, 0")
    X1[0]()
    e(f"s_add_u32 s3, s{sW}, s{sROT}"); e("s_and_b32 s3, s3, 7"); e(f"s_mul_i32 s3, s3, {64*3584}")
    e(f"s_lshr_b32 s{sFS}, s{sH}, 3"); e(f"s_sub_u32 s{sFS}, s{sH}, s{sFS}")
    e(f"s_lshl_b32 s{sWGO}, s{sFS}, 7"); e(f"s_add_u32 s{sWGO}, s{sWGO}, s3")
    e(f"s_lshr_b32 s3, s{sW}, 1"); e("s_mul_i32 s3, s3, 28"); e(f"s_and_b32 s{sT}, s{sW}, 1"); e(f"s_add_u32 s3, s3, s{sT}")
    e(f"s_lshl_b32 s{sWDO}, s3, 14"); e(f"s_lshl_b32 s{sT}, s{sNT}, 7"); e(f"s_add_u32 s{sWDO}, s{sWDO}, s{sT}")
    e(f"s_lshl_b32 s{sWOO}, s{sW}, 14"); e(f"s_add_u32 s{sWOO}, s{sWOO}, s{sT}")
    e(f"s_mul_i32 s{sHOL}, s{sMT}, {2*HO_M}"); e(f"s_add_u32 s{sHOL}, s{sHOL}, {WS_HO}"); e("s_lshl_b32 s3, s3, 10"); e(f"s_add_u32 s{sHOL}, s{sHOL}, s3")
    e(f"s_lshl_b32 s{sDONE}, s{sW}, 11"); e(f"s_add_u32 s{sDONE}, s{sDONE}, s{sKVH}")
    X1[1]()
    e(f"v_and_b32 v{U0}, 31, v0"); e(f"v_lshlrev_b32 v{T0}, 7, v{U0}"); e(f"v_add_u32 v{T0}, s{sWB}, v{T0}")
    e(f"v_bfe_u32 v{U0}, v0, 1, 3"); e(f"v_lshrrev_b32 v{U1}, 5, v0"); e(f"v_xor_b32 v{U0}, v{U0}, v{U1}")
    for s_ in range(4):
        e(f"v_xor_b32 v{T1}, {2*s_}, v{U0}"); e(f"v_lshl_add_u32 v{XR+s_}, v{T1}, 4, v{T0}")
    e(f"v_bfe_u32 v{U0}, v0, 2, 2"); e(f"v_lshl_add_u32 v{U0}, v{U1}, 3, v{U0}")
    e(f"v_and_b32 v{T0}, 3, v0"); e(f"v_lshlrev_b32 v{T0}, 3, v{T0}")
    e(f"v_lshl_add_u32 v{T1R}, v{U0}, 5, v{T0}")
    e(f"v_lshl_add_u32 v{T0R}, v{U0}, 6, v{T0}"); e(f"v_and_b32 v{T1}, 16, v0"); e(f"v_lshl_add_u32 v{T0R}, v{T1}, 1, v{T0R}")
    e(f"v_lshlrev_b32 v{GWR}, 4, v{U1}"); e(f"v_add_u32 v{GWR}, {GW_L}, v{GWR}")
    e(f"v_add_u32 v{VD0}, s{sWB}, v{T0R}")
    e(f"v_add_u32 v{VD1}, s{sWB}, v{AK}")
    e(f"v_add_u32 v{AWA}, {RA}, v{AK}"); e(f"v_add_u32 v{AWB}, {RA+4*WV}, v{AK}")
    X1[2]()
    e(f"v_and_b32 v{T0}, 15, v0"); e(f"v_lshl_add_u32 v{T0}, v{U1}, 5, v{T0}"); e(f"v_lshlrev_b32 v{T0}, 4, v{T0}")
    e(f"v_add_u32 v{AV0}, 1024, v{T0}"); e(f"v_add_u32 v{AV1}, 1280, v{T0}")
    e("s_mov_b32 exec_lo, 0xfffe0000"); e("s_mov_b32 exec_hi, 0xfffe0000")
    e(f"v_mov_b32 v{AV0}, 0x40000"); e(f"v_mov_b32 v{AV1}, 0x40000")
    e("s_mov_b32 exec_lo, 0x10000"); e("s_mov_b32 exec_hi, 0x10000")
    e(f"v_mov_b32 v{AV0}, 2048"); e(f"v_mov_b32 v{AV1}, 2048")
    e("s_mov_b64 exec, -1")
    e(f"s_lshl_b32 s3, s{sW}, 2"); e(f"s_add_u32 s3, s3, {PROG}"); e(f"v_mov_b32 v{PW}, s3")
    e(f"v_and_b32 v{T0}, 7, v0"); e(f"v_lshlrev_b32 v{VFL}, 15, v{T0}"); e(f"v_lshlrev_b32 v{PR}, 2, v{T0}"); e(f"v_add_u32 v{PR}, {PROG}, v{PR}")
    e(f"v_lshlrev_b32 v{T0}, 3, v0"); e(f"v_mov_b32 v{WB}, 0"); e(f"v_mov_b32 v{WB+1}, 0")
    k.lds("z", f"ds_write_b64 v{T0}, {vr(WB,2)} offset:{PROG}")
    X1[3]()
    eflush()
    stamp(); stamp("s1")

    WSLOT = dict(G0=2,U0=0,G1=1,U1=2)
    def w_dma(name, x):
        def f():
            if name == "U1": k.require("all:done_G0")
            k.provide(f"Wi{name}{x}")
            rs = sWG if name[0]=="G" else sWU
            dma(("W",name,x), VWG, rs, (sWGO, int(name[1])*64 + x*16*3584), sWB, WSLOT[name]*4096 + x*1024)
        return f
    FS = lambda s_: 32 + 12*(s_%2); Z=56
    def qkv_reads(s_, part):
        if s_ > 31: return
        g = s_//8; b = FS(s_); o0 = 12288*g + 1024*(s_%8); o1 = 12288*g + 8192 + 512*(s_%8)
        if part == 0:
            k.lds(("f0",s_), f"ds_read_b64_tr_b16 {vr(b,2)}, v{T0R} offset:{o0}")
            k.lds(("f0",s_), f"ds_read_b64_tr_b16 {vr(b+2,2)}, v{T0R} offset:{o0+256}")
        elif part == 1:
            k.lds(("f1",s_), f"ds_read_b64_tr_b16 {vr(b+4,2)}, v{T1R} offset:{o1}")
            k.lds(("f1",s_), f"ds_read_b64_tr_b16 {vr(b+6,2)}, v{T1R} offset:{o1+128}")
        else:
            k.lds(("f2",s_), f"ds_read_b128 {vr(b+8,4)}, v{GWR} offset:{32*s_}")
    def dbg_ld():
        e(f"v_lshrrev_b32 v{T1}, 1, v{AK}"); e(f"v_and_b32 v{T1}, 0xf8, v{T1}")
        k.vm("dbgld", f"buffer_load_dword v{T1}, v{T1}, {sr(sDBG,4)}, 0 offen sc1")
    W1, W2, W3 = wq_dma(1), wq_dma(2), wq_dma(3)
    DQ = {0: W1 + x_dma(2), 1: x_dma(3) + W2[:1], 2: W2[1:] + x_dma(4), 3: x_dma(5) + W3[:1], 4: W3[1:] + x_dma(6), 5: x_dma(7),
          6: [dbg_ld], 7: []}
    def x_read(j, s_):
        if s_ == 0: k.wait(vm=[("x",j)])
        k.lds(("xr",4*j+s_), f"ds_read_b128 {ar(16*j+4*s_,4)}, v{XR+s_} offset:{(j%3)*4096}")
    x_read(0,0); x_read(0,1)
    stamp("s1")
    e(f"v_mov_b32 v{T0}, 1"); e("s_lshl_b32 s3, s2, 3")
    k.vm("dbgst", f"buffer_store_dword v{T0}, off, {sr(sDBL,4)}, s3 sc1")
    k.wait(vm=[("wq",0)], lds=["z"])
    e("s_barrier")
    stamp("s1")
    for s_ in range(2):
        for p_ in range(3): qkv_reads(s_, p_)
    for j in range(8):
        dq = DQ[j]
        stamp("qkv")
        for s_ in range(4*j, 4*j+4):
            n_ = -(-len(dq)//(4*j+4-s_))
            b = FS(s_); xa = 4*s_
            z0 = "0" if s_ == 0 else None
            k.wait(lds=[("f0",s_),("xr",s_)])
            e(f"v_mfma_f32_32x32x16_bf16 {vr(GA,16)}, {vr(b,4)}, {ar(xa,4)}, {z0 or vr(GA,16)}")
            if s_ % 8 == 6 and s_ < 30:
                k.wait(vm=[("wq",(s_+2)//8)])
                e("s_barrier")
            if s_+2 < 32: x_read((s_+2)//4, (s_+2)%4)
            qkv_reads(s_+2, 0)
            if n_ >= 2: dq.pop(0)()
            k.wait(lds=[("f2",s_)])
            for i in range(4): e(f"v_dot2_f32_bf16 v{Z+i}, {ar(xa+i)}, v{b+8+i}, {z0 or vr(Z+i)}")
            e(f"v_mfma_f32_32x32x16_bf16 {vr(GB,16)}, {ar(xa,4)}, {vr(b+4,4)}, {z0 or vr(GB,16)}")
            qkv_reads(s_+2, 1); qkv_reads(s_+2, 2)
            if n_ >= 1: dq.pop(0)()
        assert not dq
    stamp(); stamp("qkv"); stamp("s1")
    KT=112; VT=116; ON=120
    e(f"s_mul_i32 s{sWQO}, s{sW}, {KVT}"); e(f"v_add_u32 v{U0}, s{sWQO}, v{AK}"); e(f"v_mov_b32 v{U1}, s{sWQO}")
    for i in range(4): e(f"v_mov_b32 v{ON+i}, 0x3f803f80")
    for i in range(4): e(f"v_cvt_pk_bf16_f32 v{KT+i}, v{GA+8+2*i}, v{GA+9+2*i}")
    k.vm("kv", f"buffer_store_dwordx4 {vr(KT,4)}, v{AK}, {sr(sWS,4)}, s{sKVO} offen sc1")
    for i in range(4): e(f"v_cvt_pk_bf16_f32 v{VT+i}, v{GB+2*i}, v{GB+1+2*i}")
    e("s_mov_b32 exec_lo, 0xffff0000"); e("s_mov_b32 exec_hi, 0xffff0000")
    for i in range(4): e(f"v_cvt_pk_bf16_f32 v{VT+i}, v{GB+8+2*i}, v{GB+9+2*i}")
    e("s_mov_b64 exec, -1")
    e(f"v_permlane32_swap_b32 v{VT}, v{VT+2}"); e(f"v_permlane32_swap_b32 v{VT+1}, v{VT+3}")
    k.vm("kv", f"buffer_store_dwordx4 {vr(VT,4)}, v{AK}, {sr(sWS,4)}, s{sKVO} offen offset:1024 sc1")
    k.lds("kvw", f"ds_write_b128 v{U0}, {vr(KT,4)}")
    k.lds("kvw", f"ds_write_b128 v{U0}, {vr(VT,4)} offset:1024")
    e("s_mov_b64 exec, 1"); k.lds("kvw", f"ds_write_b128 v{U1}, {vr(ON,4)} offset:2048"); e("s_mov_b64 exec, -1")
    w_dma("G0", 0)()
    e(f"s_mov_b32 s3, {f2u(0.25*LOG2E)}")
    for i in range(8): e(f"v_mul_f32 v{GA+i}, s3, v{GA+i}")
    for i in range(4): e(f"v_cvt_pk_bf16_f32 v{Q+i}, v{GA+2*i}, v{GA+1+2*i}")
    w_dma("G0", 1)()
    e(f"v_add_f32 v{Z}, v{Z}, v{Z+1}"); e(f"v_add_f32 v{Z+2}, v{Z+2}, v{Z+3}"); e(f"v_add_f32 v{Z}, v{Z}, v{Z+2}"); e(f"v_mov_b32 v{Z+1}, v{Z}")
    e(f"v_permlane32_swap_b32 v{Z}, v{Z+1}")
    e(f"v_add_f32 v{Z}, v{Z}, v{Z+1}"); e(f"v_mul_f32 v{Z}, {hex(f2u(LOG2E))}, v{Z}")
    e(f"v_exp_f32 v{VC}, v{Z}"); e(f"v_exp_f32 v{VG}, -v{Z}")
    e(f"v_add_f32 v{VC}, 1.0, v{VC}"); e(f"v_add_f32 v{VG}, 1.0, v{VG}")
    e(f"v_min_f32 v{VC}, {hex(f2u(2.0**100))}, v{VC}"); e(f"v_rcp_f32 v{VG}, v{VG}")
    def tr_rd(name, x, tmp=TT):
        def f():
            if tmp == TT: lock("TT")
            k.require(f"Wi{name}{x}"); k.wait(vm=[("W",name,x)])
            o = WSLOT[name]*4096 + x*1024
            k.lds(("tr",name,x), f"ds_read_b64_tr_b16 {vr(tmp,2)}, v{VD0} offset:{o}")
            k.lds(("tr",name,x), f"ds_read_b64_tr_b16 {vr(tmp+2,2)}, v{VD0} offset:{o+256}")
        return f
    def tr_wr(name, x, tmp=TT):
        def f():
            if tmp == TT: unlock("TT")
            k.wait(lds=[("tr",name,x)])
            k.lds(("tw",name), f"ds_write_b128 v{VD1}, {vr(tmp,4)} offset:{WSLOT[name]*4096+x*1024}")
            if x == 3: k.provide("fill_"+name)
        return f
    k.wait(vm=["dbgld"])
    def spin_global(name, load, test_ok):
        back = k.label(name+"_b"); slow = k.label(name+"_s")
        for t in test_ok: e(t)
        e(f"s_cbranch_scc0 {slow}")
        k.raw(back+":")
        k.ool.append("\n".join([slow+":", f"    s_mov_b32 s{sCNT}, {c['spin']}", slow+"_l:", "    "+load, "    s_waitcnt vmcnt(0)"]
            + ["    "+t+("\n    s_nop 1" if t.startswith("v_cmp") else "") for t in test_ok]
            + [f"    s_cbranch_scc1 {back}", f"    s_sub_u32 s{sCNT}, s{sCNT}, 1", f"    s_cmp_lg_u32 s{sCNT}, 0", f"    s_cbranch_scc1 {slow}_l"]
            + [f"    s_branch {back}"]))
    spin_global("init", f"v_lshrrev_b32 v{T1}, 1, v{AK}\n    v_and_b32 v{T1}, 0xf8, v{T1}\n    buffer_load_dword v{T1}, v{T1}, {sr(sDBG,4)}, 0 offen sc1",
                [f"v_cmp_eq_u32 vcc, 0, v{T1}", "s_cmp_eq_u64 vcc, 0"])
    k.wait_all(lds=True, vm=False)
    e("s_barrier")
    k.provide("all:fill_KV0")
    stamp()
    e("s_mov_b64 exec, 1")
    k.lds("pad", f"ds_write_b128 v{U1}, {vr(ON,4)} offset:{KVS+2048}")
    k.lds("pad", f"ds_write_b128 v{U1}, {vr(ON,4)} offset:{2*KVS+2048}")
    e("s_mov_b64 exec, -1")
    e(f"v_mov_b32 v{IDX}, 0xdddddddd")

    kvo = lambda t: ((t>>3)%3)*KVS + (t&7)*KVT
    def rK(t):
        if t > 63: return
        k.require(f"all:fill_KV{t>>3}")
        k.lds(("k",t), f"ds_read_b128 {vr(KF,4)}, v{AK} offset:{kvo(t)}")
    def rV(t, f):
        if t > 63: return
        k.require(f"all:fill_KV{t>>3}")
        k.lds(("v",f,t), f"ds_read_b128 {vr(VF+4*f,4)}, v{AV1 if f else AV0} offset:{kvo(t)}")
        if f == 1 and t % 8 == 7: k.provide(f"done_KV{t>>3}")
    Sb = lambda t: SA if t % 2 == 0 else SB
    def QK(t):
        k.wait(lds=[("k",t)])
        e(f"v_mfma_f32_32x32x16_bf16 {vr(Sb(t),16)}, {vr(KF,4)}, {vr(Q,4)}, 0")
    def PV(t, f):
        k.wait(lds=[("v",f,t)])
        e(f"v_smfmac_f32_32x32x32_bf16 {vr(O,16)}, {vr(VF+4*f,4)}, {vr(Sb(t)+8*f,8)}, v{IDX}")
    names = ["G0","U0","G1","U1"]
    def wread(i):
        if i >= 128: return
        nm = names[i//32]; s_ = i % 32
        k.require("all:fill_"+nm)
        o = (s_>>2)*WV + WSLOT[nm]*4096 + (s_&3)*1024
        a = AWA
        if s_ >= 16: a = AWB; o -= 4*WV
        k.lds(("w",i), f"ds_read_b128 {vr(WB+4*(i%NWB),4)}, v{a} offset:{o}")
        k.provide(f"wrd{i}")
        if s_ == 31: k.provide("done_"+nm)
    side = []
    vside = []
    now = [0.0]
    def at(t, fn): side.append([t, fn]); side.sort(key=lambda x: x[0])
    def gu_op(i):
        def f():
            nm = names[i//32]; s_ = i % 32
            acc = GA if nm[0] == "G" else GB
            if s_ == 0:
                if nm == "G1": k.require("prod0")
            k.require(f"wrd{i}"); k.wait(lds=[("w",i)])
            e(f"v_mfma_f32_32x32x16_bf16 {vr(acc,16)}, {vr(WB+4*(i%NWB),4)}, {ar(4*s_,4)}, {'0' if s_==0 else vr(acc,16)}")
            if nm == "U1": k.provide(f"xdead{s_}")
            wread(i+NWB)
            if s_ == 31:
                if nm[0] == "G": sigmoid(now[0]+0.5, int(nm[1]))
                else: product(now[0]+0.4, int(nm[1]))
        return f
    def sigmoid(t0, half):
        span = c["seg"][2+2*half] - 1.2
        n = 0
        for p in range(8):
            a, b = GA+2*p, GA+2*p+1
            seq = [(4, f"v_mul_f32 v{a}, {hex(f2u(-LOG2E))}, v{a}"), (4, f"v_mul_f32 v{b}, {hex(f2u(-LOG2E))}, v{b}"),
                   (8, f"v_exp_f32 v{a}, v{a}"), (8, f"v_exp_f32 v{b}, v{b}"),
                   (4, f"v_fma_f32 v{a}, v{a}, v{VC}, v{VC}"), (4, f"v_fma_f32 v{b}, v{b}, v{VC}, v{VC}"),
                   (8, f"v_rcp_f32 v{a}, v{a}"), (8, f"v_rcp_f32 v{b}, v{b}")]
            for cost, txt in seq:
                last = (p == 7 and txt is seq[-1][1])
                def f(txt=txt, last=last):
                    e(txt)
                    if last: k.provide(f"sig{half}")
                vside.append((t0 + span*n/64, cost, f)); n += 1
    def flag_store(stage):
        e(f"s_mov_b64 exec, {1<<stage}")
        k.vm(("flag",stage), f"buffer_store_dword v{AK}, off, {sr(sWS,4)}, s{sFO} sc1")
        e("s_mov_b64 exec, -1")
    def product(t0, half):
        def f():
            k.require(f"sig{half}")
            for i in range(16): e(f"v_mul_f32 v{GB+i}, v{GA+i}, v{GB+i}")
            for i in range(8): e(f"v_cvt_pk_bf16_f32 v{GB+i}, v{GB+2*i}, v{GB+2*i+1}")
            k.provide(f"prod{half}")
            def st():
                e(f"s_lshl_b32 s{sT2}, s{sFS}, 12"); e(f"s_add_u32 s{sT2}, s{sT2}, s{sHOS}")
                for j in range(2):
                    k.vm(("h",half), f"buffer_store_dwordx4 {vr(GB+4*j,4)}, v{AK}, {sr(sWSH,4)}, s{sT2} offen offset:{2048*half+1024*j} sc1")
            def fl():
                k.wait(vm=[("h",half)]); flag_store(2+half)
            at(now[0], st); at(now[0]+2.5, fl)
        vside.append((t0, 96, f))
    def ks_off(i): return 4*i if i < 7 else 2+4*(i-7)
    def wd_dma(i, q):
        def f():
            k.require("all:done_U0" if i%4 < 2 else "all:done_G1", "vwd")
            if i >= 4: k.require(f"dw_used{i-4}")
            k.provide(f"wdi{i}_{q}")
            if i < 14: dma(("wd",i), VWG, sWD, (sWDO, ks_off(i)*16384 + q*8192), sWB, (i%4)*2048 + q*1024)
            else: dma(("wd",i), VWG, sWO, (sWOO, (i-14)*8*16384 + q*8192), sWB, (i%4)*2048 + q*1024)
        return f
    def h_load(i, mi):
        def f():
            k.require("hflag2" if i < 7 else "hflag3", f"xdead{2*(i%4)+mi}")
            if i >= 4: k.require(f"dstep{i-4}")
            k.provide(f"hli{i}_{mi}")
            so = soffs((sHOL, ks_off(i)*1024 + mi*HO_M))
            k.vm(("hl",i), f"buffer_load_dwordx4 {ar(8*(i%4)+4*mi,4)}, v{AK}, {sr(sWS,4)}, {so} offen sc1")
        return f
    def d_read(i, j, dst=None):
        ni, q = j>>1, j&1
        k.require("xdead11")
        if j == 0: k.wait(vm=[("wd",i)])
        d = dst if dst else ar(32+8*(i%2)+4*ni+2*q, 2)
        k.require(f"wdi{i}_1"); k.provide(f"drd{i}_{j}")
        k.lds(("dw",i,ni), f"ds_read_b64_tr_b16 {d}, v{VD1 if ni else VD0} offset:{(i%4)*2048+q*1024}")
    def d_op(i, j):
        def f():
            ni, mi = j>>1, j&1
            k.require("xdead31", f"drd{i}_3", f"hli{i}_1")
            k.wait(lds=[("dw",i,ni)], vm=([("hl",i)] + ([("wd",i+1)] if i < 13 else [])) if j == 0 else [])
            acc = ar(64+16*(2*mi+ni),16)
            e(f"v_mfma_f32_32x32x16_bf16 {acc}, {ar(32+8*(i%2)+4*ni,4)}, {ar(8*(i%4)+4*mi,4)}, {'0' if i==0 else acc}")
            if i < 13: d_read(i+1, j)
            if j == 2: k.provide(f"dw_used{i}")
            if j == 3: k.provide(f"dstep{i}")
            hd = c["hd"]
            if j < 2 and i+hd < 14: h_load(i+hd, j)()
            if j >= 2 and i+4 < 18: wd_dma(i+4, j-2)()
        return f
    gops = [gu_op(i) for i in range(128)] + [d_op(i,j) for i in range(14) for j in range(4)]
    seg = c["seg"]
    def spread(n, T):
        return [ (n*(x+1))//T - (n*x)//T for x in range(T) ]
    ng = [0]*seg[0] + spread(32,seg[1]) + spread(32,seg[2]) + [0] + spread(32,seg[3]-1) + spread(32,seg[4])
    tG0 = seg[0]; tU0 = tG0+seg[1]; tG1 = tU0+seg[2]; tU1 = tG1+seg[3]; GT = tU1+seg[4]
    ng += spread(56, 64-GT)
    assert sum(ng) == len(gops) and max(ng) <= 4, ng
    nep = [0]
    def epoch(ts, tc, pre=None):
        row = nep[0]; nep[0] += 1; assert row < 16
        snap = set()
        def sig():
            if pre: pre()
            snap.update(x for x in k.have if x.startswith(("fill_","done_")))
            k.lds(("sig",row), f"ds_write_b32 v{PW}, v{PW} offset:{32*row}")
        def rd(): lock("T0"); k.lds(("chk",row), f"ds_read_b32 v{T0}, v{PR} offset:{32*row}")
        def chk():
            unlock("T0")
            k.wait(lds=[("chk",row)])
            back = k.label("ep_b"); slow = k.label("ep_s")
            e(f"v_cmp_eq_u32 vcc, 0, v{T0}"); e(f"s_cbranch_vccnz {slow}"); k.raw(back+":")
            k.ool.append("\n".join([slow+":", f"    s_mov_b32 s{sCNT}, {c['spin']*16}", "    s_setprio 0", slow+"_l:",
                f"    ds_read_b32 v{T0}, v{PR} offset:{32*row}", "    s_waitcnt lgkmcnt(0)", f"    v_cmp_eq_u32 vcc, 0, v{T0}", "    s_nop 1",
                f"    s_cbranch_vccz {slow}_x", f"    s_sub_u32 s{sCNT}, s{sCNT}, 1", f"    s_cmp_lg_u32 s{sCNT}, 0", f"    s_cbranch_scc1 {slow}_l",
                slow+"_x:", f"    s_setprio {curprio[0]}", f"    s_branch {back}"]))
            k.provide(*("all:"+x for x in snap))
        at(ts, sig); at(tc-0.3, rd); at(tc, chk)
    curprio = [0]
    def kv_fetch(ch, tpoll, tdma):
        pre = [f"s_add_u32 s{sT2}, s{sR}, {ch}", f"s_and_b32 s{sT2}, s{sT2}, 7", f"s_lshl_b32 s{sT2}, s{sT2}, 15", f"s_add_u32 s{sT2}, s{sT2}, s{sFK}"] if ch < 3 else []
        ld = f"buffer_load_dword v{T1}, off, {sr(sWS,4)}, s{sT2} sc1" if ch < 3 else f"buffer_load_dword v{T1}, v{VFL}, {sr(sWS,4)}, s{sFK} offen sc1"
        def poll():
            lock("T1")
            for t in pre: e(t)
            k.vm(("kp",ch), ld)
        def pick():
            unlock("T1")
            k.wait(vm=[("kp",ch)])
            spin_global("kv", "\n    ".join(pre+[ld]), [f"v_cmp_eq_u32 vcc, 0, v{T1}", "s_cmp_eq_u64 vcc, 0"])
            k.provide(f"kvflag{ch}")
        def d(q):
            def f():
                k.require(f"kvflag{min(ch,3)}")
                if ch >= 3: k.require(f"all:done_KV{ch-3}")
                k.provide(f"kvi{ch}_{q}")
                if q == 0:
                    e(f"s_add_u32 s{sT2}, s{sR}, {ch}"); e(f"s_and_b32 s{sT2}, s{sT2}, 7"); e(f"s_lshl_b32 s{sT2}, s{sT2}, 14"); e(f"s_add_u32 s{sKVO}, s{sT2}, s{sDONE}")
                dma(("kvd",ch), AK, sWS, (sKVO, 1024*q), sWQO, (ch%3)*KVS + 1024*q, sc1=True)
            return f
        if ch <= 3: at(tpoll, poll); at(tdma-0.01, pick)
        at(tdma, d(0)); at(tdma+(0.01 if ch == 1 else 0.4), d(1))
    def kv_landed(ch):
        def f(): k.require(f"kvi{ch}_1"); k.wait(vm=[("kvd",ch)]); k.provide(f"fill_KV{ch}")
        return f
    hld = f"buffer_load_dword v{T1}, v{VFL}, {sr(sWS,4)}, s{sFK} offen sc1"
    def h_flag(stage, tpoll, tchk):
        def poll():
            lock("T1"); k.require("vwd")
            k.vm(("hp",stage), hld)
        def chk():
            unlock("T1")
            k.wait(vm=[("hp",stage)])
            spin_global("ho", hld, [f"v_cmp_gt_u32 vcc, {16*stage}, v{T1}", "s_cmp_eq_u64 vcc, 0"])
            k.provide(f"hflag{stage}")
        if tpoll is None: poll(); chk()
        else: at(tpoll, poll); at(tchk, chk)
    def pub_kv(): k.wait(vm=["kv"]); flag_store(1)
    at(c.get("t_pub",0.3), pub_kv)
    def w_tile(name, t0, step, lag, first=0, tstep=None):
        for x in range(4):
            if x >= first: at(t0+step*x, w_dma(name,x))
            tt = t0+lag+(tstep or step)*x
            tmp = GB+4*x if name == "G0" else TT
            at(tt, tr_rd(name,x,tmp)); at(tt+0.3, tr_wr(name,x,tmp))
    def pf(rs, rows, n):
        def f():
            lock("T0"); unlock("T0")
            e(f"v_lshlrev_b32 v{T0}, 6, v{AK}")
            e(f"s_and_b32 s3, s{sMT}, 3"); e("s_lshl_b32 s3, s3, 3"); e(f"s_add_u32 s3, s3, s{sW}"); e(f"s_mul_i32 s3, s3, {n*1024}")
            e(f"s_lshl_b32 s{sT2}, s{sNT}, 7"); e(f"s_add_u32 s3, s3, s{sT2}")
            e(f"s_mov_b32 m0, {JUNK}")
            e(f"s_bfm_b64 exec, {n}, 0")
            k.vm("pf", f"buffer_load_dword v{T0}, {sr(rs,4)}, s3 offen lds")
            e("s_mov_b64 exec, -1")
        return f
    TL = c.get("tl", {})
    w_tile("G0", -0.9, 0.5, tG0-1.1, first=2, tstep=0.2)
    epoch(tG0-1.0, tG0-0.6)
    for i in range(NWB): at(tG0-0.5, lambda i=i: wread(i))
    kv_fetch(1, c.get("t_poll",2.5), c.get("t_dma",3.6))
    epoch(5.3, 5.9, kv_landed(1))
    kv_fetch(2, 4.6, 6.1)
    w_tile("U0", 4.0, 1.0, 3.0)
    epoch(10.6, min(13.0, tU0-1.3), kv_landed(2))
    kv_fetch(3, 11.4, 13.2)
    w_tile("G1", 9.0, 1.0, 3.0)
    epoch(max(17.0,tU0), min(21.0, tG1-1.3), kv_landed(3))
    if c["pf"]: at(14.5, pf(sWD, 1792, 56)); at(15.5, pf(sWO, 512, 16))
    kv_fetch(4, 0, 21.2)
    w_tile("U1", 22.0, 1.0, 2.6)
    epoch(28.2, 29.6, kv_landed(4))
    kv_fetch(5, 0, 29.8)
    def vwd():
        k.require("fill_U1", "kvflag3"); lock("T0"); unlock("T0")
        e(f"v_lshrrev_b32 v{T0}, 8, v{AK}"); e(f"v_and_b32 v{T0}, 1, v{T0}"); e(f"v_lshlrev_b32 v{T0}, 6, v{T0}")
        e(f"v_and_b32 v{VWG}, 0x70, v{AK}"); e(f"v_xor_b32 v{VWG}, v{VWG}, v{T0}")
        e(f"v_lshrrev_b32 v{T0}, 7, v{AK}"); e(f"v_lshl_add_u32 v{VWG}, v{T0}, 10, v{VWG}")
        e(f"v_bfe_u32 v{VD0}, v{AK}, 6, 2"); e(f"v_lshrrev_b32 v{T0}, 9, v{AK}"); e(f"v_lshl_add_u32 v{VD0}, v{T0}, 2, v{VD0}"); e(f"v_lshlrev_b32 v{VD0}, 7, v{VD0}")
        e(f"v_bfe_u32 v{T0}, v{AK}, 4, 2"); e(f"v_lshl_add_u32 v{VD0}, v{T0}, 3, v{VD0}")
        e(f"v_bfe_u32 v{T0}, v{AK}, 8, 1"); e(f"v_lshl_add_u32 v{VD0}, v{T0}, 5, v{VD0}")
        e(f"v_bfe_u32 v{T0}, v{AK}, 7, 1"); e(f"v_lshl_add_u32 v{VD0}, v{T0}, 6, v{VD0}")
        e(f"v_xor_b32 v{VD1}, 64, v{VD0}")
        e(f"v_add_u32 v{VD0}, s{sWB}, v{VD0}"); e(f"v_add_u32 v{VD1}, s{sWB}, v{VD1}")
        e(f"v_lshlrev_b32 v{VFL}, 12, v{T0}"); e(f"v_and_b32 v{T0}, 0x70, v{AK}"); e(f"v_lshl_add_u32 v{VFL}, v{T0}, 3, v{VFL}")
        e(f"s_lshr_b32 s3, s{sW}, 1"); e("s_lshl_b32 s3, s3, 10"); e(f"s_lshl_b32 s{sFK}, s{sMT}, 13"); e(f"s_add_u32 s{sFK}, s{sFK}, s3")
        k.provide("vwd")
    at(30.6, vwd)
    epoch(max(33.8,tU1), min(37.5,GT-4.0), kv_landed(5))
    for i in range(4):
        for q in range(2): at((GT-8 if i < 2 else GT-5.8)+1.0*i+0.5*q, wd_dma(i,q))
    h_flag(2, GT-5.6, GT-4.2)
    for i in range(c["hd"]):
        for mi in range(2): at(GT-2.3+0.8*i+0.4*mi, h_load(i,mi))
    for j in range(4): at(GT-1.2+0.2*j, lambda j=j: d_read(0,j))
    kv_fetch(6, 0, 37.7)
    epoch(41.8, 45.0, kv_landed(6))
    tl = GT + (7-c["hd"])*4*(64-GT)/56
    kv_fetch(7, 0, 45.4)
    h_flag(3, tl-1.9, tl-0.6)
    epoch(50.0, 53.5, kv_landed(7))

    abl0 = len(k.ins)
    rK(0); rV(0,0)
    for i in range(16): e(f"v_mov_b32 v{O+i}, 0")
    QK(0); rK(1)
    gi = 0
    ORD = {0:["PV2","QK","PV1"], 1:["PV2","QK","PV1","G"], 2:["PV2","QK","G","PV1","G"], 3:["PV2","QK","G","PV1","G","G"], 4:["PV2","G","QK","G","PV1","G","G"]}
    for t in range(64):
        if t % 8 in c["prio"]:
            curprio[0] = c["prio"][t%8]; e(f"s_setprio {curprio[0]}")
        if t in (6,8,16,GT,GT+12): stamp()
        S = Sb(t)
        ms = ORD[ng[t]]; n = len(ms); posn = {}
        for x, m in enumerate(ms):
            p = int(round(2 + 16*x/n)) % 16
            if m == "PV1": p = max(p, 10)
            if m == "QK": p = min(p, 5 if n <= 4 else 7)
            posn.setdefault(p, []).append(m)
        for p in range(16):
            now[0] = t + p/16
            for m in posn.get(p, []):
                if m == "PV2":
                    if t > 0: PV(t-1, 1)
                    rV(t, 1)
                elif m == "QK":
                    if t < 63: QK(t+1)
                    rK(t+2)
                elif m == "PV1":
                    PV(t, 0); rV(t+1, 0)
                else:
                    gops[gi](); gi += 1
                ns = 0
                while side and side[0][0] <= now[0] - 0.35*ns:
                    side.pop(0)[1](); ns += 1
            while vside and vside[0][0] <= now[0]:
                vside.pop(0)[2]()
            e(f"v_exp_f32 v{S+p}, v{S+p}")
    assert not side and not vside and gi == len(gops), (side, vside)
    PV(63, 1)
    abl = c.get("abl", "").split(",")
    if abl != [""]:
        keep = []
        import re as _re
        for ins in k.ins[abl0:]:
            t_ = ins.text
            if "vmwait" in abl and ins.op == "s_waitcnt" and "vmcnt" in t_:
                t2 = _re.sub(r"vmcnt\(\d+\) ?", "", t_).strip()
                if t2 == "s_waitcnt": continue
                ins = Ins(t2)
            if "vmem" in abl and ins.kind == "vmem" and not ("store_dword " in t_): continue
            if "branch" in abl and ins.op.startswith("s_cbranch"): continue
            if "prio" in abl and ins.op == "s_setprio": continue
            if "salu" in abl and ins.kind == "salu" and ins.op.startswith(("s_add","s_and","s_lshl","s_mul","s_lshr")): continue
            if "sig" in abl and ins.kind == "valu" and ins.w and ins.w[0][0] == "v" and GA <= ins.w[0][1] < WB: continue
            keep.append(ins)
        k.ins[abl0:] = keep
        e("s_waitcnt vmcnt(0) lgkmcnt(0)")
    e("s_setprio 0")
    stamp()
    e("s_nop 15")
    e(f"v_mov_b32 v{O+9}, v{O+8}"); e(f"v_permlane32_swap_b32 v{O+8}, v{O+9}")
    lo, hi = (2.0**-40, 2.0**40) if not c["force_fb"] else (2.0**40, 2.0**41)
    e(f"v_cmp_le_f32 vcc, {hex(f2u(lo))}, v{O+8}"); e(f"s_mov_b64 s[26:27], vcc")
    e(f"v_cmp_ge_f32 vcc, {hex(f2u(hi))}, v{O+8}"); e(f"s_and_b64 vcc, vcc, s[26:27]")
    e("s_cmp_eq_u64 vcc, -1"); e("s_cbranch_scc0 L_fallback")
    k.raw("L_fb_back:")
    e(f"v_rcp_f32 v{T0}, v{O+8}"); e(f"v_mul_f32 v{T0}, v{T0}, v{VG}")
    for i in range(8): e(f"v_mul_f32 v{O+i}, v{O+i}, v{T0}")
    for i in range(4): e(f"v_cvt_pk_bf16_f32 v{O+i}, v{O+2*i}, v{O+2*i+1}")
    e(f"s_lshl_b32 s{sT2}, s{sH}, 10"); e(f"s_add_u32 s{sT2}, s{sT2}, s{sHOS}"); e(f"s_add_u32 s{sT2}, s{sT2}, {112*1024}")
    k.vm("o", f"buffer_store_dwordx4 {vr(O,4)}, v{AK}, {sr(sWS,4)}, s{sT2} offen sc1")
    for i in range(14,18):
        for j in range(4): d_read(i, j, vr(GA+8*(i-14)+2*j, 2))
    k.wait(vm=["o"]); flag_store(4)
    RW = SA; RR = SA+4
    e(f"v_lshrrev_b32 v0, 4, v{AK}")
    e(f"v_and_b32 v{T0}, 31, v0"); e(f"v_lshlrev_b32 v{RW+8}, 8, v{T0}"); e(f"s_lshl_b32 s3, s{sW}, 14"); e(f"v_add_u32 v{RW+8}, s3, v{RW+8}")
    e(f"v_and_b32 v{T0}, 7, v0"); e(f"v_lshrrev_b32 v{RW+9}, 5, v0"); e(f"v_xor_b32 v{T0}, v{T0}, v{RW+9}")
    for j in range(4):
        e(f"v_xor_b32 v{RW+9}, {2*j}, v{T0}"); e(f"v_lshl_add_u32 v{RW+j}, v{RW+9}, 4, v{RW+8}")
    e(f"v_lshrrev_b32 v{RW+8}, 3, v0"); e(f"v_and_b32 v{T0}, 7, v0"); e(f"v_lshlrev_b32 v{T0}, 1, v{T0}"); e(f"v_xor_b32 v{T0}, v{T0}, v{RW+8}")
    e(f"v_lshlrev_b32 v{T0}, 4, v{T0}"); e(f"v_lshl_add_u32 v{RR}, v{RW+8}, 8, v{T0}"); e(f"s_lshl_b32 s3, s{sW}, 11"); e(f"v_add_u32 v{RR}, s3, v{RR}")
    e(f"v_xor_b32 v{RR+1}, 16, v{RR}"); e(f"v_add_u32 v{RR+2}, 65536, v{RR}"); e(f"v_add_u32 v{RR+3}, 65536, v{RR+1}")
    e(f"v_and_b32 v{T0}, 0x70, v{AK}"); e(f"v_lshl_add_u32 v{RW+10}, v{RW+8}, 10, v{T0}")
    e(f"s_lshl_b32 s{sXO}, s{sMT}, 16"); e(f"s_lshl_b32 s3, s{sW}, 13"); e(f"s_add_u32 s{sXO}, s{sXO}, s3"); e(f"s_lshl_b32 s3, s{sNT}, 7"); e(f"s_add_u32 s{sXO}, s{sXO}, s3")
    e(f"v_and_b32 v{VFL}, 7, v0"); e(f"v_lshlrev_b32 v{VFL}, 10, v{VFL}")
    e(f"s_lshl_b32 s3, s{sW}, 7"); e(f"s_lshl_b32 s{sFK}, s{sMT}, 13"); e(f"s_add_u32 s{sFK}, s{sFK}, s3")
    k.wait_all(lds=True, vm=False)
    e("s_barrier")
    stamp()
    h_flag(4, None, None)
    stamp()
    e(f"s_mul_i32 s{sHOL}, s{sMT}, {2*HO_M}"); e(f"s_lshl_b32 s3, s{sW}, 10"); e(f"s_add_u32 s{sHOL}, s{sHOL}, s3")
    for i in range(4):
        for mi in range(2):
            so = soffs((sHOL, WS_HO + (112+8*i)*1024 + mi*HO_M))
            k.vm(("ol",i), f"buffer_load_dwordx4 {ar(8*i+4*mi,4)}, v{AK}, {sr(sWS,4)}, {so} offen sc1")
    for i in range(4):
        k.wait(vm=[("ol",i)])
        for j in range(4):
            ni, mi = j>>1, j&1
            acc = ar(64+16*(2*mi+ni),16)
            e(f"v_mfma_f32_32x32x16_bf16 {acc}, {vr(GA+8*i+4*ni,4)}, {ar(8*i+4*mi,4)}, {acc}")
    for jj in range(4):
        ni, mi = jj>>1, jj&1
        for j in range(4):
            k.lds("rw", f"ds_write_b128 v{RW+j}, {ar(64+16*(2*mi+ni)+4*j,4)} offset:{mi*8192+ni*128}")
    k.wait_all(lds=True, vm=False)
    e("s_barrier")
    stamp()
    RD = 64
    for p in range(8):
        for x in range(2):
            k.lds(("rr",p), f"ds_read_b128 {vr(RD+8*p+4*x,4)}, v{RR+x+2*(p>>2)} offset:{(p&3)*16384}")
    for p in range(1,8):
        k.wait(lds=[("rr",p)])
        for i in range(8): e(f"v_add_f32 v{RD+i}, v{RD+i}, v{RD+8*p+i}")
    for i in range(4): e(f"v_cvt_pk_bf16_f32 v{RD+i}, v{RD+2*i}, v{RD+2*i+1}")
    k.vm("out", f"buffer_store_dwordx4 {vr(RD,4)}, v{RW+10}, {sr(sOUT,4)}, s{sXO} offen")
    if "diag_pad" in c: k.wait_all(); stamp("end")
    if c["stamps"]:
        k.wait_all(); stamp("end")
        e("s_memrealtime s[26:27]"); e("s_waitcnt lgkmcnt(0)")
        e(f"s_lshl_b32 s3, s2, 3"); e(f"s_add_u32 s3, s3, s{sW}"); e("s_lshl_b32 s3, s3, 7"); e(f"s_add_u32 s3, s3, {WS_ST}")
        vals = ["s98","s26","s100"] + [f"s{sST+i}" for i in range(nst[0])]
        for i, v in enumerate(vals):
            e(f"v_mov_b32 v{T0}, {v}"); e(f"buffer_store_dword v{T0}, off, {sr(sWS,4)}, s3 offset:{4*i}")
    k.raw("L_end:")
    e("s_endpgm")
    f = K(); g = f.e
    f.raw("L_fallback:")
    g("s_waitcnt vmcnt(0) lgkmcnt(0)")
    MX = T0; CN = SB
    g(f"v_mov_b32 v{MX}, 0xff800000"); g(f"s_mov_b32 s{sT2}, s{sKVH}"); g(f"s_mov_b32 s{sCNT}, 64")
    f.raw("L_fb1:")
    g(f"buffer_load_dwordx4 {vr(KF,4)}, v{AK}, {sr(sWS,4)}, s{sT2} offen sc1"); g("s_waitcnt vmcnt(0)")
    g(f"v_mfma_f32_32x32x16_bf16 {vr(SA,16)}, {vr(KF,4)}, {vr(Q,4)}, 0")
    for i in range(8): g(f"v_max3_f32 v{MX}, v{MX}, v{SA+2*i}, v{SA+2*i+1}")
    g(f"s_add_u32 s{sT2}, s{sT2}, 2048"); g(f"s_sub_u32 s{sCNT}, s{sCNT}, 1"); g(f"s_cmp_lg_u32 s{sCNT}, 0"); g("s_cbranch_scc1 L_fb1")
    g(f"v_mov_b32 v{T1}, v{MX}"); g(f"v_permlane32_swap_b32 v{MX}, v{T1}"); g(f"v_max_f32 v{MX}, v{MX}, v{T1}")
    for i in range(16): g(f"v_sub_f32 v{CN+i}, 0, v{MX}")
    for i in range(16): g(f"v_mov_b32 v{O+i}, 0")
    for i in range(8): g(f"v_mov_b32 v{VF+i}, 0x3f803f80")
    g(f"s_mov_b32 s{sT2}, s{sKVH}"); g(f"s_mov_b32 s{sCNT}, 64")
    f.raw("L_fb2:")
    g(f"buffer_load_dwordx4 {vr(KF,4)}, v{AK}, {sr(sWS,4)}, s{sT2} offen sc1")
    g("s_mov_b32 exec_lo, 0xffff"); g("s_mov_b32 exec_hi, 0xffff")
    g(f"buffer_load_dwordx4 {vr(VF,4)}, v{AV0}, {sr(sWS,4)}, s{sT2} offen sc1")
    g(f"buffer_load_dwordx4 {vr(VF+4,4)}, v{AV1}, {sr(sWS,4)}, s{sT2} offen sc1")
    g("s_mov_b64 exec, -1"); g("s_waitcnt vmcnt(0)")
    g(f"v_mfma_f32_32x32x16_bf16 {vr(SA,16)}, {vr(KF,4)}, {vr(Q,4)}, {vr(CN,16)}")
    for i in range(16): g(f"v_exp_f32 v{SA+i}, v{SA+i}")
    g(f"v_smfmac_f32_32x32x32_bf16 {vr(O,16)}, {vr(VF,4)}, {vr(SA,8)}, v{IDX}")
    g(f"v_smfmac_f32_32x32x32_bf16 {vr(O,16)}, {vr(VF+4,4)}, {vr(SA+8,8)}, v{IDX}")
    g(f"s_add_u32 s{sT2}, s{sT2}, 2048"); g(f"s_sub_u32 s{sCNT}, s{sCNT}, 1"); g(f"s_cmp_lg_u32 s{sCNT}, 0"); g("s_cbranch_scc1 L_fb2")
    g("s_nop 15"); g("s_branch L_fb_back")

    hdr = open("cdna_kernels/%s.s.ref" % NAME).read().split("; Override launch geometry")[0]
    out = hdr + f"; @launch grid=(256,1,1) block=(512,1,1) lds={LDS_BYTES}\n"
    out += f""".amdgcn_target "amdgcn-amd-amdhsa--gfx950"
.text
.globl {NAME}_kernel
.p2align 8
.type {NAME}_kernel,@function
{NAME}_kernel:
"""
    out += k.text() + "\n" + "\n".join(k.ool) + "\n" + f.text() + f"""
.section .rodata,"a"
.p2align 6
.amdhsa_kernel {NAME}_kernel
  .amdhsa_next_free_vgpr 256
  .amdhsa_next_free_sgpr 102
  .amdhsa_accum_offset 256
  .amdhsa_group_segment_fixed_size 0
  .amdhsa_kernarg_size 88
  .amdhsa_user_sgpr_count 2
  .amdhsa_user_sgpr_kernarg_segment_ptr 1
  .amdhsa_system_sgpr_workgroup_id_x 1
.end_amdhsa_kernel
"""
    sys.stderr.write(f"instrs {len(k.ins)} nops {k.nops} ng {ng}\n")
    return out

if __name__ == "__main__":
    import json
    cfg = json.loads(sys.argv[2]) if len(sys.argv) > 2 else {}
    if "prio" in cfg: cfg["prio"] = {int(a): b for a, b in cfg["prio"].items()}
    open(sys.argv[1], "w").write(gen(cfg))
```

```python
import re

TRANS = ("v_exp_f32","v_rcp_f32","v_log_f32","v_rsq_f32","v_sqrt_f32")

def regs_of(tok):
    tok = tok.strip()
    tok = tok.lstrip("-")
    if tok.startswith("abs(") : tok = tok[4:-1]
    if tok.startswith("|"): tok = tok.strip("|")
    m = re.fullmatch(r"([vas])(\d+)", tok)
    if m: return [(m.group(1), int(m.group(2)))]
    m = re.fullmatch(r"([vas])\[(\d+):(\d+)\]", tok)
    if m: return [(m.group(1), i) for i in range(int(m.group(2)), int(m.group(3))+1)]
    if tok == "vcc": return [("s","vcc")]
    if tok in ("vcc_lo","vcc_hi"): return [("s","vcc")]
    if tok == "m0": return [("s","m0")]
    if tok in ("exec","exec_lo","exec_hi"): return [("s","exec")]
    return []

class Ins:
    def __init__(s, text):
        s.text = text
        t = text.split(";")[0].strip()
        s.label = t.endswith(":")
        s.directive = t.startswith(".")
        s.op = t.split()[0] if t else ""
        rest = t[len(s.op):].strip()
        rest = re.sub(r"\s+op_sel(_hi)?:\[[01,]+\]", "", rest)
        ops = [x.strip() for x in rest.split(",")] if rest else []
        mods = ""
        if ops:
            parts = ops[-1].split()
            ops[-1] = parts[0]; mods = " ".join(parts[1:])
        s.ops = ops; s.mods = mods
        s.w = []; s.r = []; s.c = []
        op = s.op
        s.kind = "other"
        s.states = 1
        if s.label or s.directive or not op:
            s.kind = "none"; s.states = 0; return
        if op == "s_nop":
            s.kind = "nop"; s.states = int(ops[0]) + 1; return
        if op.startswith("v_smfmac"):
            s.kind = "mfma"; s.passes = 8
            s.w = regs_of(ops[0]); s.r = regs_of(ops[1]) + regs_of(ops[2]) + regs_of(ops[3]); s.c = regs_of(ops[0])
        elif op.startswith("v_mfma"):
            s.kind = "mfma"
            s.passes = 2 if "4x4x4" in op else (8 if "32x32x16" in op else 4)
            s.w = regs_of(ops[0]); s.r = regs_of(ops[1]) + regs_of(ops[2]); s.c = regs_of(ops[3])
        elif op.startswith("v_"):
            s.kind = "valu"
            s.trans = op.replace("_e32","").replace("_e64","") in TRANS
            if op.startswith("v_permlane") and "swap" in op:
                s.w = regs_of(ops[0]) + regs_of(ops[1]); s.r = list(s.w)
            elif op.startswith(("v_add_co","v_addc_co")):
                s.w = regs_of(ops[0]) + regs_of(ops[1])
                for o in ops[2:]: s.r += regs_of(o)
            else:
                s.w = regs_of(ops[0])
                for o in ops[1:]: s.r += regs_of(o)
                if op.startswith(("v_fmac","v_dot2c")) : s.r += regs_of(ops[0])
        elif op.startswith("ds_"):
            s.kind = "ds"
            if op.startswith("ds_read"):
                s.w = regs_of(ops[0]); s.r = regs_of(ops[1])
            else:
                for o in ops: s.r += regs_of(o)
                s.data = regs_of(ops[1]) if op.endswith("b128") else []
        elif op.startswith("buffer_") or op.startswith("global_"):
            s.kind = "vmem"
            s.dma = " lds" in (" " + mods)
            s.data = []
            if op.startswith("buffer_load") and not s.dma:
                s.w = regs_of(ops[0])
                for o in ops[1:]: s.r += regs_of(o)
            elif op.startswith("global_load") and not s.dma:
                s.w = regs_of(ops[0])
                for o in ops[1:]: s.r += regs_of(o)
            else:
                for o in ops: s.r += regs_of(o)
                if s.dma: s.r += [("s","m0")]
                if op == "buffer_store_dwordx4": s.data = regs_of(ops[0])
        elif op.startswith("s_"):
            s.kind = "salu"
            if op.startswith(("s_cmp","s_bitcmp","s_cbranch","s_branch","s_waitcnt","s_barrier","s_setprio","s_endpgm")):
                for o in ops: s.r += regs_of(o)
            else:
                if ops: s.w = regs_of(ops[0])
                for o in ops[1:]: s.r += regs_of(o)

def need_states(p, c):
    n = 0
    pw = set(p.w); cr = set(c.r); cw = set(c.w); cc = set(c.c)
    vw = {x for x in pw if x[0] in "va"}
    sw = {x for x in pw if x[0] == "s"}
    if p.kind == "valu":
        if c.kind == "mfma" and vw & (cr | cc): n = max(n, 2)
        if c.kind == "valu":
            if p.trans and vw & cr: n = max(n, 1)
            if p.op.startswith("v_dot") and vw & (cr | cw):
                same_c = c.op == p.op and not (vw & set(regs_of(c.ops[1]) + regs_of(c.ops[2])))
                if not same_c: n = max(n, 3)
            if c.op.startswith(("v_readfirstlane","v_readlane")) and vw & cr: n = max(n, 1)
            if c.op.startswith("v_permlane") and vw & cr: n = max(n, 2)
            if "dpp" in c.text and vw & cr: n = max(n, 2)
            if sw & cr: n = max(n, 2)
        if c.kind == "vmem" and sw & cr: n = max(n, 5)
        if c.kind == "salu" and sw & cr: n = max(n, 1)
        if p.trans and c.kind in ("ds","vmem") and vw & cr: n = max(n, 1)
    if p.kind == "mfma":
        big = {2:5, 4:8, 8:12}[p.passes]
        if c.kind in ("valu","ds","vmem") and vw & (cr | cw): n = max(n, big)
        if c.kind == "mfma":
            if vw & cr: n = max(n, big)
            if vw & cc:
                if cc == vw and c.passes == p.passes: n = max(n, 2 if p.passes == 2 else 0)
                else: n = max(n, {2:4, 4:6, 8:10}[p.passes])
            elif vw & cw and c.passes != p.passes: n = max(n, big)
        if c.kind == "valu" and set(p.c) & cw: n = max(n, {2:1, 4:3, 8:7}[p.passes])
    if p.kind == "salu" and ("s","m0") in pw and c.kind == "vmem" and c.dma: n = max(n, 1)
    if p.kind in ("vmem","ds") and getattr(p, "data", None):
        if set(p.data) & cw: n = max(n, 2)
    return n

class K:
    def __init__(s):
        s.ins = []
        s.lq = []
        s.vq = []
        s.have = set()
        s.nops = 0
        s.ool = []
        s.verify = True
        s.keep = 15
        s.nl = 0
    def label(s, base):
        s.nl += 1
        return f"L_{base}_{s.nl}"
    def raw(s, text):
        s.ins.append(Ins(text))
    def e(s, text):
        for line in text.split("\n"):
            line = line.strip()
            if not line: continue
            s._emit(Ins(line))
    def _emit(s, c):
        if c.kind not in ("none","nop"):
            dist = 0; need = 0
            for p in reversed(s.ins):
                if dist >= 13: break
                if p.kind not in ("none","nop"):
                    k = need_states(p, c)
                    if k - dist > need: need = k - dist
                dist += p.states
            if need > 0:
                s.ins.append(Ins(f"s_nop {need-1}")); s.nops += need
            if s.verify:
                touched = set(c.r) | set(c.w) | set(c.c)
                for q, nm in ((s.lq,"lgkm"),(s.vq,"vm")):
                    for tag, regs in q:
                        if touched & regs:
                            raise Exception(f"pending {nm} load {tag} touches regs of: {c.text}")
        s.ins.append(c)
    def lds(s, tag, text):
        c = Ins(text); s._emit(c); s.lq.append((tag, set(c.w)))
    def vm(s, tag, text):
        c = Ins(text); s._emit(c); s.vq.append((tag, set(c.w)))
    def _need(s, q, tags):
        idx = [i for i,(t,_) in enumerate(q) if t in tags]
        if not idx: return None
        last = max(idx)
        return len(q) - 1 - last
    def wait(s, lds=(), vm=()):
        parts = []
        n = s._need(s.vq, vm)
        if n is not None:
            n = min(n, 63)
            parts.append(f"vmcnt({n})"); s.vq = s.vq[len(s.vq)-n:] if n else []
        n = s._need(s.lq, lds)
        if n is not None:
            n = min(n, 15, s.keep)
            parts.append(f"lgkmcnt({n})"); s.lq = s.lq[len(s.lq)-n:] if n else []
        if parts: s.e("s_waitcnt " + " ".join(parts))
    def wait_all(s, lds=True, vm=True):
        parts = []
        if vm: parts.append("vmcnt(0)"); s.vq = []
        if lds: parts.append("lgkmcnt(0)"); s.lq = []
        s.e("s_waitcnt " + " ".join(parts))
    def provide(s, *tags): s.have.update(tags)
    def require(s, *tags):
        for t in tags:
            if t not in s.have: raise Exception(f"order violation: {t} not provided yet")
    def text(s):
        out = []
        for i in s.ins:
            out.append(i.text if (i.label or i.directive) else "    " + i.text)
        return "\n".join(out)

def vr(b, n=1, p="v"):
    return f"{p}{b}" if n == 1 else f"{p}[{b}:{b+n-1}]"
def ar(b, n=1): return vr(128+b, n, "v")
def sr(b, n=1): return vr(b, n, "s")
```

```python
import sys, math, struct
from asmlib import *

NAME = "gated_mix__mha_block__glu_gated_glu__prompt"
LOG2E = 1.4426950408889634
def f2u(x): return struct.unpack("<I", struct.pack("<f", x))[0]

KVT = 2064; KVS = 8*KVT
GW_L = 49664; PROG = 50688; RA = 51200; WV = 12288
JUNK = GW_L
LDS_BYTES = RA + 8*WV + 256
WS_KV = 0x100000; WS_HO = 0x500000; HO_T = 144*2048; WS_ST = 0x1000000; WS_Q = 0x1100000; WS_SZ = 0x2000000
IDX = 0
AK,AV0,AV1,AWA,AWB,VC,VG,PW,PR,T0,T1,VWG,VFL,VD0,VD1 = range(1,16)
Q=16; KF=20; VF=24; SA=32; SB=48; O=64; GA=80; GB=96; WB=112; TT=124
VWG2 = TT; VWM = TT+1
sX,sWA,sWO,sWG,sWU,sWD,sGW,sOUT,sDBG,sWS,sWB2,sWSL,sDBL = range(4,56,4)
sW,sH,sR,sROT,sMT,sNT,sWB,sXO,sWQO,sKVO,sKVH,sFO,sFK,sHOS,sHOL,sWDO,sKVW,sT,sT2,sCNT = range(56,76)
sROLE,sSTR,sCA,sCB,sWGO,sWMO,sM,sWQ2 = range(76,84)
sST = 84

DEF = dict(stamps=False, hd=2, spin=1<<20, rot="h2r", seg=[3,18], pf=True, nd=2, nwb=3,
           prio={0:3,3:2,6:1,7:0}, force_fb=False, touch=True, outmod="", k_touch=-1, k_flag=1, k_poll=33, k_chk=42, k_chk1=50, s1touch=False,
           k_m=[14,22,52,58], t_h=1.5, t_hs=1.0, t_me=1.8, t_p2=4.2, gd=2, gprio=True, poison=True, e_lead=0)

def gen(cfg):
    c = dict(DEF); c.update(cfg)
    k = K(); e = k.e
    NWB = c["nwb"]; ND = c["nd"]
    nst = [0]; npt = [0]
    locks = set()
    def lock(x):
        assert x not in locks, x
        locks.add(x)
    def unlock(x): locks.remove(x)
    clk = "s_memrealtime" if c["stamps"] == "rt" else "s_memtime"
    def stamp(grp="main"):
        if grp in ("main","end"):
            if c.get("diag_pad") == npt[0]:
                k.wait_all(lds=True, vm=False)
                k.raw("L_pad:"); e("s_memrealtime s[98:99]"); e("s_waitcnt lgkmcnt(0)"); e("s_sub_u32 s98, s98, s100"); e("s_cmp_lt_u32 s98, 6000"); e("s_cbranch_scc1 L_pad")
            npt[0] += 1
        if not c["stamps"]: return
        if grp not in c.get("stgrp","main").split(",") and grp != "end": return
        i = nst[0]; nst[0] += 1
        assert i < 14
        e(clk + " s[98:99] ; STAMP"); k.wait_all(lds=True, vm=False)
        e(f"s_mov_b32 s{sST+i}, s98")
    m0 = [None]
    def setm0(base, off):
        if m0[0] == (base, off): return
        m0[0] = (base, off)
        if base is None: e(f"s_mov_b32 m0, {off}")
        elif off == 0: e(f"s_mov_b32 m0, s{base}")
        else: e(f"s_add_u32 m0, s{base}, {off}")
    def dma(tag, voff, rs, so, base, off, imm=0, sc1=False):
        setm0(base, off)
        k.vm(tag, f"buffer_load_dwordx4 v{voff}, {sr(rs,4)}, {so} offen" + (f" offset:{imm}" if imm else "") + (" sc1" if sc1 else "") + " lds")
    def srd23(s, n): e(f"s_mov_b32 s{s+2}, {n}"); e(f"s_mov_b32 s{s+3}, 0x20000")

    X0=64; XR=68; T0R=72; GWR=74; VWS=75; U0=78; U1=79
    e(f"s_load_dwordx2 {sr(sX,2)}, s[0:1], 0"); e(f"s_load_dwordx2 {sr(sWA,2)}, s[0:1], 8")
    e(f"s_load_dwordx2 {sr(sWG,2)}, s[0:1], 32"); e(f"s_load_dwordx2 {sr(sWU,2)}, s[0:1], 40")
    if c["stamps"] or "diag_pad" in c:
        e("s_memrealtime s[100:101]"); e(clk + " s[98:99]"); e("s_waitcnt lgkmcnt(0)"); e("s_mov_b32 s101, s98")
    e("s_cmp_ge_u32 s2, 256"); e("s_cbranch_scc1 L_end")
    if c["touch"]:
        e("s_getpc_b64 s[98:99]"); e("s_bfe_u32 s3, s2, 0x20003"); e("s_lshl_b32 s3, s3, 13")
        e("v_and_b32 v1, 0x1f8, v0"); e("v_lshl_add_u32 v1, v1, 4, s3")
        e("v_mov_b32 v3, s99"); e("v_add_co_u32 v2, vcc, s98, v1")
        e(f"v_lshrrev_b32 v{T0}, 6, v0"); e(f"v_and_b32 v0, 63, v0")
        e("v_addc_co_u32 v3, vcc, 0, v3, vcc")
        k.vm("touch", f"global_load_dword v{TT}, v[2:3], off")
    else:
        e(f"v_lshrrev_b32 v{T0}, 6, v0"); e(f"v_and_b32 v0, 63, v0")
    e(f"v_readfirstlane_b32 s{sW}, v{T0}")
    e(f"s_and_b32 s{sT}, s2, 7"); e(f"s_lshr_b32 s{sT2}, s2, 3")
    if True:
        e(f"s_and_b32 s{sR}, s2, 1"); e(f"s_lshr_b32 s{sMT}, s2, 6"); e(f"s_lshl2_add_u32 s{sR}, s{sR}, s{sMT}")
        e(f"s_and_b32 s{sNT}, s{sT2}, 7"); e(f"s_lshr_b32 s{sH}, s{sT}, 1"); e(f"s_lshl3_add_u32 s{sH}, s{sH}, s{sNT}")
    if c["rot"] == "h2r": e(f"s_lshl1_add_u32 s{sROT}, s{sR}, s{sH}"); e(f"s_and_b32 s{sROT}, s{sROT}, 7")
    elif c["rot"] == "none": e(f"s_mov_b32 s{sROT}, 0")
    elif c["rot"] == "p4": e(f"s_and_b32 s3, s{sH}, 3"); e(f"s_lshl_b32 s{sROT}, s3, 1")
    elif c["rot"] == "xr":
        e(f"s_lshr_b32 s{sROT}, s{sT}, 1"); e(f"s_and_b32 s3, s{sT}, 1"); e(f"s_lshl1_add_u32 s{sROT}, s3, s{sROT}")
        e(f"s_lshl2_add_u32 s{sROT}, s{sH}, s{sROT}"); e(f"s_and_b32 s{sROT}, s{sROT}, 7")
    elif c["rot"] == "x1":
        e(f"s_and_b32 s{sROT}, s2, 6"); e(f"s_lshl2_add_u32 s{sROT}, s2, s{sROT}"); e(f"s_and_b32 s{sROT}, s{sROT}, 7")
    elif c["rot"] == "xs":
        e(f"s_lshr_b32 s{sROT}, s{sT}, 1"); e(f"s_and_b32 s3, s{sT}, 1"); e(f"s_lshl1_add_u32 s{sROT}, s3, s{sROT}")
        e(f"s_add_u32 s3, s{sH}, s{sR}"); e(f"s_lshl2_add_u32 s{sROT}, s3, s{sROT}"); e(f"s_and_b32 s{sROT}, s{sROT}, 7")
    elif c["rot"] == "y4":
        e(f"s_bfe_u32 s{sROT}, s2, 0x10001"); e(f"s_add_u32 s3, s{sH}, s{sR}"); e(f"s_lshl1_add_u32 s{sROT}, s3, s{sROT}"); e(f"s_and_b32 s{sROT}, s{sROT}, 7")
    elif c["rot"] == "x4":
        e(f"s_bfe_u32 s{sROT}, s2, 0x10001"); e(f"s_lshl1_add_u32 s{sROT}, s{sH}, s{sROT}"); e(f"s_and_b32 s{sROT}, s{sROT}, 7")
    e(f"s_lshl2_add_u32 s{sMT}, s{sT}, s{sMT}")
    e(f"v_lshrrev_b32 v{U0}, 4, v0"); e(f"v_and_b32 v{U1}, 7, v0"); e(f"v_xor_b32 v{U0}, v{U0}, v{U1}")
    e(f"v_lshlrev_b32 v{U0}, 4, v{U0}"); e(f"v_lshrrev_b32 v{U1}, 3, v0"); e(f"v_lshl_add_u32 v{X0}, v{U1}, 10, v{U0}")
    e(f"v_xor_b32 v{X0+1}, 64, v{X0}"); e(f"v_add_u32 v{X0+1}, {8192-1024}, v{X0+1}")
    e(f"v_add_u32 v{X0+2}, {16384-2048}, v{X0}"); e(f"v_add_u32 v{X0+3}, {16384-2048}, v{X0+1}")
    e(f"s_mul_i32 s{sWB}, s{sW}, {WV}"); e(f"s_add_u32 s{sWB}, s{sWB}, {RA}")
    e(f"s_lshl3_add_u32 s{sM}, s{sR}, s{sW}")
    e(f"s_lshl_b32 s{sXO}, s{sM}, 15")
    srd23(sX, 2048*512*2)
    def x_dma(j):
        def f(i):
            def g_():
                if i == 0:
                    if j: e(f"s_add_u32 s3, s{sROT}, {j}"); e("s_and_b32 s3, s3, 7"); e("s_lshl_b32 s3, s3, 7")
                    else: e(f"s_lshl_b32 s3, s{sROT}, 7")
                    setm0(sWB, (j%3)*4096)
                    e(f"s_add_u32 s{sCNT}, s3, s{sXO}")
                    if j == 0: e("s_waitcnt lgkmcnt(0)")
                dma(("x",j), X0+i, sX, f"s{sCNT}", sWB, (j%3)*4096, imm=i*1024)
            return g_
        return [f(i) for i in range(4)]
    stamp("s1")
    for f_ in x_dma(0): f_()
    stamp("s1")
    e(f"s_and_b32 s{sROLE}, s{sH}, 3")
    e(f"s_lshr_b32 s3, s{sH}, 3"); e(f"s_mul_i32 s{sWGO}, s3, 896")
    e(f"s_and_b32 s3, s{sH}, 4"); e(f"s_lshl4_add_u32 s{sCB}, s3, s{sWGO}"); e(f"s_add_u32 s{sCB}, s{sCB}, 512")
    e(f"s_lshr_b32 s3, s{sH}, 2"); e(f"s_lshl3_add_u32 s3, s{sROLE}, s3"); e(f"s_lshl_b32 s{sCA}, s3, 7"); e(f"s_add_u32 s3, s{sCA}, 64")
    e(f"s_cmp_lt_u32 s{sROLE}, 3")
    e(f"s_cselect_b32 s{sCA}, s{sCA}, s{sCB}"); e(f"s_cselect_b32 s{sCB}, s3, s{sCB}")
    e(f"s_cselect_b64 {sr(sWB2,2)}, {sr(sWA,2)}, {sr(sWU,2)}"); e(f"s_cselect_b64 {sr(sWA,2)}, {sr(sWA,2)}, {sr(sWG,2)}")
    e(f"s_cselect_b32 s{sSTR}, 6, 7"); e(f"s_lshl_b32 s{sWA+2}, s{sSTR}, 18"); e(f"s_mov_b32 s{sWB2+2}, s{sWA+2}")
    e(f"s_mov_b32 s{sWA+3}, 0x20000"); e(f"s_mov_b32 s{sWB2+3}, 0x20000")
    e(f"s_lshl_b32 s3, s{sSTR}, 9"); e(f"s_lshl_b32 s{sSTR}, s{sSTR}, 13")
    e(f"v_lshrrev_b32 v{U0}, 2, v0"); e(f"v_mul_u32_u24 v{VWS}, s3, v{U0}"); e(f"v_mul_u32_u24 v{VWG}, 3584, v{U0}")
    e(f"v_and_b32 v{U0}, 3, v0"); e(f"v_lshl_add_u32 v{VWS}, v{U0}, 4, v{VWS}"); e(f"v_lshl_add_u32 v{VWG}, v{U0}, 4, v{VWG}")
    sW10 = sHOL; sK0 = sFK
    e(f"s_lshl_b32 s{sW10}, s{sW}, 10"); e(f"s_lshl2_add_u32 s{sK0}, s{sROT}, s{sW}")
    def wq_dma(g):
        def a():
            if g == 3: k.require("bar14")
            if g: e(f"s_add_u32 s{sK0}, s{sK0}, 8")
            e(f"s_and_b32 s{sK0}, s{sK0}, 31"); e(f"s_mul_i32 s3, s{sK0}, s{sSTR}")
            setm0(sW10, 16384*(g%3))
            e(f"s_add_u32 s{sWQO}, s3, s{sCA}")
            dma(("wq",g), VWS, sWA, f"s{sWQO}", sW10, 16384*(g%3))
            setm0(sW10, 16384*(g%3)+8192)
            e(f"s_add_u32 s{sWQ2}, s3, s{sCB}")
            dma(("wq",g), VWS, sWB2, f"s{sWQ2}", sW10, 16384*(g%3)+8192)
        return [a]
    for f_ in wq_dma(0): f_()
    stamp("s1")
    for s_, o_ in ((sGW,56),(sWS,80),(sDBG,72),(sDBL,72),(sWO,16),(sWD,48),(sOUT,64)):
        e(f"s_load_dwordx2 {sr(s_,2)}, s[0:1], {o_}")
    X1 = x_dma(1)
    e(f"v_lshlrev_b32 v{AK}, 4, v0")
    srd23(sWG, 512*1792*2); srd23(sWU, 512*1792*2)
    srd23(sGW, 1024); srd23(sWS, WS_SZ); srd23(sDBG, 256); srd23(sWO, 512*512*2); srd23(sWD, 1792*512*2); srd23(sOUT, 2048*512*2)
    for s_ in (sDBL,): e(f"s_mov_b32 s{s_+3}, 0x20000")
    e(f"s_lshr_b32 s3, s2, 5"); e(f"s_or_b32 s3, s3, s{sW}"); e("s_cmp_eq_u32 s3, 0")
    e(f"s_cselect_b32 s{sDBL+2}, 256, 0")
    e(f"v_mov_b32 v{T0}, 0"); e(f"v_lshlrev_b32 v{T1}, 7, v0")
    e(f"s_add_u32 s{sT}, s{sROT}, s{sW}"); e(f"s_and_b32 s{sT}, s{sT}, 7")
    e(f"s_lshl_b32 s{sT2}, s{sW}, 7"); setm0(sT2, GW_L); e(f"s_lshl_b32 s3, s{sT}, 7")
    e("s_waitcnt lgkmcnt(0)")
    e("s_mov_b64 exec, 0xff")
    dma(("wq",0), AK, sGW, "s3", sT2, GW_L)
    e("s_mov_b64 exec, -1")
    e(f"s_cmp_eq_u32 s{sDBL+2}, 0"); e("s_cbranch_scc1 L_nolead")
    e("s_lshl_b32 s3, s2, 13")
    e(f"buffer_store_dword v{T0}, v{T1}, {sr(sWS,4)}, s3 offen sc1")
    k.raw("L_nolead:")
    e(f"s_mul_i32 s{sT}, s{sT}, {64*3584}"); e(f"s_add_u32 s{sT}, s{sT}, s{sWGO}")
    e(f"s_lshl_b32 s3, s{sNT}, 5"); e(f"s_add_u32 s{sWMO}, s{sT}, s3"); e(f"s_add_u32 s{sWGO}, s{sWMO}, s3"); e(f"s_add_u32 s{sWMO}, s{sWMO}, 640")
    X1[0]()
    e(f"v_and_b32 v{U0}, 31, v0"); e(f"v_lshlrev_b32 v{PR}, 7, v{U0}"); e(f"v_add_u32 v{PR}, s{sWB}, v{PR}")
    e(f"v_bfe_u32 v{U0}, v0, 1, 3"); e(f"v_lshrrev_b32 v{U1}, 5, v0"); e(f"v_xor_b32 v{U0}, v{U0}, v{U1}")
    for s_ in range(4):
        e(f"v_xor_b32 v{PW}, {2*s_}, v{U0}"); e(f"v_lshl_add_u32 v{XR+s_}, v{PW}, 4, v{PR}")
    X1[1]()
    e(f"v_bfe_u32 v{U0}, v0, 2, 2"); e(f"v_lshl_add_u32 v{U0}, v{U1}, 3, v{U0}")
    e(f"v_and_b32 v{PR}, 3, v0"); e(f"v_lshlrev_b32 v{PR}, 3, v{PR}")
    e(f"v_lshl_add_u32 v{VD0}, v{U0}, 5, v{PR}")
    e(f"v_lshl_add_u32 v{T0R}, v{U0}, 6, v{PR}"); e(f"v_and_b32 v{PW}, 16, v0"); e(f"v_lshl_add_u32 v{T0R}, v{PW}, 1, v{T0R}")
    e(f"v_lshlrev_b32 v{GWR}, 4, v{U1}"); e(f"v_add_u32 v{GWR}, {GW_L}, v{GWR}")
    e(f"v_add_u32 v{AWA}, {RA}, v{T0R}"); e(f"v_add_u32 v{AWB}, {RA+4*WV}, v{T0R}")
    e(f"v_lshl_add_u32 v{VD0}, v{PW}, 7, v{VD0}"); e(f"v_add_u32 v{VD0}, {RA}, v{VD0}"); e(f"v_add_u32 v{VD1}, {4*WV}, v{VD0}")
    X1[2]()
    e(f"v_and_b32 v{PR}, 15, v0"); e(f"v_lshl_add_u32 v{PR}, v{U1}, 5, v{PR}"); e(f"v_lshlrev_b32 v{PR}, 4, v{PR}")
    e(f"v_add_u32 v{AV0}, 1024, v{PR}"); e(f"v_add_u32 v{AV1}, 1280, v{PR}")
    e("s_mov_b32 exec_lo, 0xfffe0000"); e("s_mov_b32 exec_hi, 0xfffe0000")
    e(f"v_mov_b32 v{AV0}, 0x40000"); e(f"v_mov_b32 v{AV1}, 0x40000")
    e("s_mov_b32 exec_lo, 0x10000"); e("s_mov_b32 exec_hi, 0x10000")
    e(f"v_mov_b32 v{AV0}, 2048"); e(f"v_mov_b32 v{AV1}, 2048")
    e("s_mov_b64 exec, -1")
    e(f"s_lshl2_add_u32 s3, s{sW}, {PROG}"); e(f"v_mov_b32 v{PW}, s3")
    e(f"v_and_b32 v{U0}, 7, v0"); e(f"v_lshlrev_b32 v{PR}, 2, v{U0}"); e(f"v_add_u32 v{PR}, {PROG}, v{PR}")
    e(f"v_and_b32 v{VFL}, 3, v0"); e(f"v_lshlrev_b32 v{VFL}, 7, v{VFL}")
    e(f"v_lshrrev_b32 v{U0}, 1, v0"); e(f"v_mul_u32_u24 v{VWM}, 3584, v{U0}"); e(f"v_and_b32 v{U0}, 1, v0"); e(f"v_lshl_add_u32 v{VWM}, v{U0}, 4, v{VWM}")
    e(f"v_lshlrev_b32 v{U0}, 3, v0"); e(f"v_mov_b32 v{WB}, 0"); e(f"v_mov_b32 v{WB+1}, 0")
    k.lds("z", f"ds_write_b64 v{U0}, {vr(WB,2)} offset:{PROG}")
    X1[3]()
    stamp(); stamp("s1")

    WSLOT = dict(G=2,U=0,M=1)
    def w_dma(name, x):
        lb = WSLOT[name]*4096 + (1024*(x&2) if name == "M" else 0)
        def pre(): setm0(sWB, lb)
        def f():
            k.provide(f"Wi{name}{x}")
            if name == "M":
                pre()
                if x & 1: e(f"s_add_u32 s{sT}, s{sWMO}, {32*3584 - 1024}")
                dma(("W",name), VWM, sWG if x < 2 else sWU, f"s{sT if x&1 else sWMO}", sWB, lb, imm=1024*(x&1))
            else:
                e(f"s_add_u32 s3, s{sR}, {x}"); e("s_and_b32 s3, s3, 3"); e(f"s_mul_i32 s{sT}, s3, {16*3584}")
                e("s_lshl_b32 s3, s3, 10"); e(f"s_add_u32 s3, s3, s{sWB}"); m0[0] = None; setm0(3, lb)
                e(f"s_add_u32 s{sT}, s{sT}, s{sWGO}")
                dma(("W",name), VWG, sWG if name == "G" else sWU, f"s{sT}", 3, lb); m0[0] = None
        f.pre = pre
        return f
    def touch(rs, n, mask=None):
        def f():
            lock("T0"); unlock("T0")
            e(f"v_lshlrev_b32 v{T0}, 3, v{AK}")
            e(f"s_lshl3_add_u32 s3, s2, s{sW}"); e(f"s_mul_i32 s3, s3, {n*128}")
            setm0(None, LDS_BYTES-256)
            for r_, m_ in zip(rs, mask or [(1<<n)-1]):
                e(f"s_mov_b64 exec, {m_}")
                k.vm("pf", f"buffer_load_dword v{T0}, {sr(r_,4)}, s3 offen lds")
            e("s_mov_b64 exec, -1")
        return f
    FS = lambda s_: 32 + 12*(s_%2); Z=56
    def st_reads(s_, part):
        if s_ > 31: return
        g = s_//8; b = FS(s_); o = 16384*(g%3) + 8192*part + 1024*(s_%8)
        if part < 2:
            k.lds(("f",part,s_), f"ds_read_b64_tr_b16 {vr(b+4*part,2)}, v{T0R} offset:{o}")
            k.lds(("f",part,s_), f"ds_read_b64_tr_b16 {vr(b+4*part+2,2)}, v{T0R} offset:{o+256}")
        else:
            k.lds(("f",2,s_), f"ds_read_b128 {vr(b+8,4)}, v{GWR} offset:{32*s_}")
    dbg_txt = [f"v_lshrrev_b32 v{T1}, 1, v{AK}", f"buffer_load_dword v{T1}, v{T1}, {sr(sDBG,4)}, 0 offen sc1"]
    def masked(mask, tx):
        on = ["s_mov_b32 exec_hi, 0"] if mask == 0xffffffff else [f"s_mov_b64 exec, {hex(mask)}"]
        return tx[:-1] + on + [tx[-1], "s_mov_b64 exec, -1"]
    def poll_issue(tag, mask, tx):
        for t in masked(mask, tx):
            if t.startswith("buffer_"): k.vm(tag, t)
            else: e(t)
    def dbg_ld(): poll_issue("dbgld", 0xffffffff, dbg_txt)
    def dbg_st():
        k.wait(vm=[("x",1)])
        e(f"v_mov_b32 v{T0}, 1"); e("s_lshl_b32 s3, s2, 3")
        k.vm("dbgst", f"buffer_store_dword v{T0}, off, {sr(sDBL,4)}, s3 sc1")
    DQ = {0: wq_dma(1) + x_dma(2), 1: [dbg_st] + x_dma(3), 2: wq_dma(2) + x_dma(4), 3: x_dma(5), 4: wq_dma(3) + x_dma(6), 5: x_dma(7),
          6: [dbg_ld] + [w_dma("G",x) for x in range(4)], 7: [touch([sWU,sWG], 7, [0x6f,0x60])]}
    def x_read(j, s_):
        if s_ == 0: k.wait(vm=[("x",j)])
        k.lds(("xr",4*j+s_), f"ds_read_b128 {ar(16*j+4*s_,4)}, v{XR+s_} offset:{(j%3)*4096}")
    if c["s1touch"]: touch([sWG], 7, [0x0f])()
    x_read(0,0); x_read(0,1)
    k.wait(vm=[("wq",0)], lds=["z"])
    e("s_barrier")
    stamp("s1")
    for s_ in range(2):
        for p_ in range(2): st_reads(s_, p_)
    e(f"s_cmp_eq_u32 s{sROLE}, 2"); e("s_cbranch_scc1 L_vloop")
    loop0 = len(k.ins)
    for j in range(8):
        dq = DQ[j]
        stamp("qkv")
        for s_ in range(4*j, 4*j+4):
            n_ = -(-len(dq)//(4*j+4-s_))
            b = FS(s_); xa = 4*s_
            z0 = "0" if s_ == 0 else None
            k.wait(lds=[("f",0,s_),("xr",s_)])
            e(f"v_mfma_f32_32x32x16_bf16 {vr(GA,16)}, {vr(b,4)}, {ar(xa,4)}, {z0 or vr(GA,16)}")
            if s_ % 8 == 6 and s_ < 30:
                k.wait(vm=[("wq",(s_+2)//8)])
                e("s_barrier"); k.provide(f"bar{s_}")
            if s_+2 < 32: x_read((s_+2)//4, (s_+2)%4)
            st_reads(s_+2, 0)
            if n_ >= 2: dq.pop(0)()
            k.wait(lds=[("f",1,s_)])
            e(f"v_mfma_f32_32x32x16_bf16 {vr(GB,16)}, {vr(b+4,4)}, {ar(xa,4)}, {z0 or vr(GB,16)}")
            st_reads(s_+2, 1)
            if n_ >= 1: dq.pop(0)()
            if s_ == c["k_touch"]: touch([sWG], 7, [0x0f])()
            if s_ == 28:
                e(f"s_lshl_b32 s3, s{sH}, 7"); e(f"s_lshl_b32 s{sFO}, s{sM}, 12"); e(f"s_add_u32 s{sFO}, s{sFO}, s3")
                e(f"s_and_b32 s3, s3, 0xe00"); e(f"s_lshl_b32 s{sFK}, s{sW}, 12"); e(f"s_add_u32 s{sFK}, s{sFK}, s3")
                e(f"s_lshr_b32 s3, s{sM}, 1"); e(f"s_mul_i32 s{sHOS}, s3, {HO_T}"); e(f"s_and_b32 s3, s{sW}, 1"); e("s_lshl_b32 s3, s3, 10")
                e(f"s_add_u32 s{sHOS}, s{sHOS}, s3"); e(f"s_add_u32 s{sHOS}, s{sHOS}, {WS_HO}")
                e(f"s_lshr_b32 s3, s{sH}, 3"); e(f"s_mul_i32 s3, s3, {28*2048}"); e(f"s_add_u32 s{sCA}, s3, s{sHOS}")
                e(f"s_lshl_b32 s3, s{sH}, 11"); e(f"s_add_u32 s3, s3, s{sHOS}"); e(f"s_add_u32 s{sHOS}, s3, {112*2048}")
            if s_ == 29:
                for i in range(4): e(f"v_mov_b32 v{WB+i}, 0")
                e(f"v_lshrrev_b32 v{T0}, 7, v{AK}"); e(f"v_and_b32 v{WB+4}, 0x70, v{AK}"); e(f"v_lshl_add_u32 v{T0}, v{T0}, 18, v{WB+4}")
                e("s_mov_b32 exec_lo, 0xffffff00"); e("s_mov_b32 exec_hi, 0")
                k.vm("st", f"buffer_store_dwordx4 {vr(WB,4)}, v{T0}, {sr(sWS,4)}, s{sFO} offen sc1")
                e("s_mov_b64 exec, -1")
                e(f"s_lshl_b32 s{sKVH}, s{sH}, 17"); e(f"s_and_b32 s{sKVO}, s{sKVH}, 0x380000"); e(f"s_add_u32 s{sKVH}, s{sKVH}, {WS_KV}")
                e(f"s_lshl_b32 s3, s{sM}, 11"); e(f"s_add_u32 s{sKVO}, s{sKVO}, s3")
                e(f"s_add_u32 s{sCB}, s{sKVH}, s3"); e(f"s_add_u32 s{sCB}, s{sCB}, {WS_Q-WS_KV}")
                e(f"s_cmp_eq_u32 s{sROLE}, 0"); e(f"s_cselect_b32 s3, {WS_Q-WS_KV}, 0"); e(f"s_add_u32 s{sKVO}, s{sKVO}, s3"); e(f"s_add_u32 s{sKVO}, s{sKVO}, {WS_KV}")
                e(f"s_lshl_b32 s{sKVW}, s{sW}, 11"); e(f"s_add_u32 s{sKVW}, s{sKVW}, s{sKVH}")
                e(f"s_mul_i32 s{sWQO}, s{sW}, {KVT}")
            if s_ == 30:
                e(f"s_lshr_b32 s3, s{sW}, 1"); e("s_mul_i32 s3, s3, 28"); e(f"s_and_b32 s{sT}, s{sW}, 1"); e(f"s_add_u32 s3, s3, s{sT}"); e("s_add_u32 s3, s3, 16")
                e(f"s_lshl_b32 s{sWDO}, s3, 14"); e(f"s_lshl_b32 s{sT}, s{sNT}, 7"); e(f"s_add_u32 s{sWDO}, s{sWDO}, s{sT}")
                e(f"s_mul_i32 s{sHOL}, s{sMT}, {HO_T}"); e(f"s_mul_i32 s3, s{sW}, {14*2048}"); e(f"s_add_u32 s{sHOL}, s{sHOL}, s3"); e(f"s_add_u32 s{sHOL}, s{sHOL}, {WS_HO}")
        assert not dq
    stamp(); stamp("qkv"); stamp("s1"); stamp("win")
    loop1 = len(k.ins)
    PK = 32
    def gate_code(e_):
        e_(f"v_add_f32 v{Z}, v{Z}, v{Z+1}"); e_(f"v_add_f32 v{Z+2}, v{Z+2}, v{Z+3}"); e_(f"v_add_f32 v{Z}, v{Z}, v{Z+2}"); e_(f"v_mov_b32 v{Z+1}, v{Z}")
        e_(f"v_permlane32_swap_b32 v{Z}, v{Z+1}")
        e_(f"v_add_f32 v{Z}, v{Z}, v{Z+1}"); e_(f"v_mul_f32 v{Z}, {hex(f2u(LOG2E))}, v{Z}")
        e_(f"v_exp_f32 v{VC}, v{Z}"); e_(f"v_exp_f32 v{VG}, -v{Z}")
        e_(f"v_add_f32 v{VC}, 1.0, v{VC}"); e_(f"v_add_f32 v{VG}, 1.0, v{VG}")
        e_(f"v_min_f32 v{VC}, {hex(f2u(2.0**100))}, v{VC}"); e_(f"v_rcp_f32 v{VG}, v{VG}")
    def sig_seq(regs):
        out = []
        for p in range(0, len(regs), 4):
            q_ = regs[p:p+4]
            out += [f"v_mul_f32 v{a}, {hex(f2u(-LOG2E))}, v{a}" for a in q_] + [f"v_exp_f32 v{a}, v{a}" for a in q_]
            out += [f"v_fma_f32 v{a}, v{a}, v{VC}, v{VC}" for a in q_] + [f"v_rcp_f32 v{a}, v{a}" for a in q_]
        return out
    kv_ = K(); kv_.verify = False
    kv_.raw("L_vloop:")
    for ins in k.ins[loop0:loop1]:
        t_ = ins.text.replace("; STAMP", "")
        if ins.op.startswith("v_mfma"): t_ = f"{ins.op} {ins.ops[0]}, {ins.ops[2]}, {ins.ops[1]}, {ins.ops[3]}"
        assert not ins.label
        kv_.raw(t_)
    ev = kv_.e
    ev(f"v_and_b32 v{U0}, 0x2f0, v{AK}"); ev(f"v_bfe_u32 v{U1}, v{AK}, 8, 1"); ev(f"v_lshl_add_u32 v{U0}, v{U1}, 17, v{U0}")
    ev(f"s_add_u32 s{sT}, s{sKVO}, {2*131072}")
    for p in range(4):
        a_ = (GA if p < 2 else GB) + 8*(p&1); d_ = PK+4*p
        for i in range(4): ev(f"v_cvt_pk_bf16_f32 v{d_+i}, v{a_+2*i}, v{a_+2*i+1}")
        ev(f"v_permlane32_swap_b32 v{d_}, v{d_+2}"); ev(f"v_permlane32_swap_b32 v{d_+1}, v{d_+3}")
        ev(f"buffer_store_dwordx4 {vr(d_,4)}, v{U0}, {sr(sWS,4)}, s{sKVO if p < 2 else sT} offen offset:{1024+256*(p&1)} sc1")
    ev("s_branch L_join")
    kv_.raw("L_fepi:")
    ev("s_nop 7"); ev(f"v_mov_b32 v{VC}, 1.0")
    for t_ in sig_seq(list(range(GA,GA+16))): ev(t_)
    for i in range(8): ev(f"v_pk_mul_f32 {vr(PK+2*i,2)}, {vr(GA+2*i,2)}, {vr(GB+2*i,2)}")
    ev("s_waitcnt vmcnt(0)")
    ev("s_branch L_join")
    kv_.raw("L_fepi2:")
    ev(f"v_rcp_f32 v{T0}, v{VC}")
    ev(f"s_and_b32 s3, s{sH}, 4"); ev("s_lshl_b32 s3, s3, 9"); ev(f"s_add_u32 s3, s3, s{sCA}"); ev(f"s_add_u32 s{sT}, s3, {14*2048}")
    for i in range(16): ev(f"v_mul_f32 v{PK+i}, v{PK+i}, v{T0}")
    for i in range(8): ev(f"v_cvt_pk_bf16_f32 v{PK+i}, v{PK+2*i}, v{PK+2*i+1}")
    ev(f"buffer_store_dwordx4 {vr(PK,4)}, v{AK}, {sr(sWS,4)}, s3 offen sc1")
    ev(f"buffer_store_dwordx4 {vr(PK+4,4)}, v{AK}, {sr(sWS,4)}, s{sT} offen sc1")
    ev("s_branch L_join2")
    e(f"s_cmp_eq_u32 s{sROLE}, 3"); e("s_cbranch_scc1 L_fepi")
    e(f"s_mov_b32 s98, {hex(f2u(0.25*LOG2E))}"); e("s_mov_b32 s99, s98")
    e(f"s_cmp_eq_u32 s{sROLE}, 0"); e("s_cbranch_scc1 L_qepi")
    kv_.raw("L_qepi:"); ev("s_nop 7")
    for p in range(4):
        a_ = (GA if p < 2 else GB) + 8*(p&1); d_ = PK+4*p
        for i in range(4): ev(f"v_pk_mul_f32 {vr(a_+2*i,2)}, {vr(a_+2*i,2)}, s[98:99]")
        for e_ in (e, ev):
            for i in range(4): e_(f"v_cvt_pk_bf16_f32 v{d_+i}, v{a_+2*i}, v{a_+2*i+1}")
        st_ = f"buffer_store_dwordx4 {vr(d_,4)}, v{AK}, {sr(sWS,4)}, s{sKVO} offen sc1"
        k.vm("st", st_); ev(st_)
        if p < 3:
            for e_ in (e, ev): e_(f"s_add_u32 s{sKVO}, s{sKVO}, 131072")
    ev("s_branch L_join")
    k.raw("L_join:")
    GZ = lambda i: GA + 4*(i%8)
    def gwread(i):
        if i < 32: k.lds(("gw",i), f"ds_read_b128 {vr(GZ(i),4)}, v{GWR} offset:{32*i}")
    e("s_nop 1")
    for i in range(8): gwread(i)
    for s_ in range(0,32,4):
        k.wait(lds=[("gw",s_+3)])
        for x in range(s_, s_+4):
            for i in range(4): e(f"v_dot2_f32_bf16 v{Z+i}, {ar(4*x+i)}, v{GZ(x)+i}, {'0' if x==0 else vr(Z+i)}")
        for x in range(s_, s_+4): gwread(x+8)
    e(f"v_mov_b32 v61, s{sWQO}")
    for i in range(4): e(f"v_mov_b32 v{48+i}, 0x3f803f80")
    e(f"v_mov_b32 v{IDX}, 0xdddddddd")
    def spin_global(name, mask, load):
        back = k.label(name+"_b"); slow = k.label(name+"_s")
        test = [f"v_cmp_eq_u32 vcc, 0, v{T1}", f"s_and_b32 s3, vcc_lo, {hex(mask)}"]
        for t in test: e(t)
        e(f"s_cbranch_scc1 {slow}")
        k.raw(back+":")
        k.ool.append("\n".join([slow+":", f"    s_mov_b32 s{sCNT}, {c['spin']}", slow+"_l:"] + ["    "+t for t in masked(mask, load)] + ["    s_waitcnt vmcnt(0)"]
            + ["    "+test[0], "    s_nop 1", "    "+test[1]]
            + [f"    s_cbranch_scc0 {back}", f"    s_sub_u32 s{sCNT}, s{sCNT}, 1", f"    s_cmp_lg_u32 s{sCNT}, 0", f"    s_cbranch_scc1 {slow}_l"]
            + [f"    s_branch {back}"]))
    def flag_store(stage):
        if stage > 1: k.require(f"flag{stage-1}")
        k.provide(f"flag{stage}")
        e("s_mov_b64 exec, 2")
        k.vm(("flag",stage), f"buffer_store_dword v{AK}, off, {sr(sWS,4)}, s{sFO} sc1")
        e("s_mov_b64 exec, -1")
        if stage < 4: e(f"s_add_u32 s{sFO}, s{sFO}, 0x40000")
    stamp("win")
    k.wait(vm=["dbgld", ("W","G")])
    spin_global("init", 0xffffffff, dbg_txt)
    e("s_barrier")
    k.provide("all:fill_G")
    stamp(); stamp("win"); stamp("gst")
    names = ["G","U","M"]
    def wread(i, buf=None):
        if i >= 96: return
        nm = names[i//32]; s_ = i % 32
        k.require("all:fill_"+nm)
        b = buf if buf is not None else WB+4*(i%NWB)
        o = ((s_>>2)&3)*WV + WSLOT[nm]*4096
        if nm == "M": a = VD0 if s_ < 16 else VD1; o += (s_&3)*512; d_ = 128
        else: a = AWA if s_ < 16 else AWB; o += (s_&3)*1024; d_ = 256
        k.lds(("w",i), f"ds_read_b64_tr_b16 {vr(b,2)}, v{a} offset:{o}")
        k.lds(("w",i), f"ds_read_b64_tr_b16 {vr(b+2,2)}, v{a} offset:{o+d_}")
        k.provide(f"wrd{i}")
        if s_ == 31: k.provide("done_"+nm)
    KVM = [0x7, 0x6, 0x66666666]
    def kv_poll_txt(ch):
        if ch == 2: return [f"buffer_load_dword v{T1}, v{VFL}, {sr(sWS,4)}, s{sFK} offen sc1"]
        return [f"s_add_u32 s{sT2}, s{sR}, {ch}", f"s_and_b32 s{sT2}, s{sT2}, 7", f"s_lshl_b32 s{sT2}, s{sT2}, 15", f"s_add_u32 s{sT2}, s{sT2}, s{sFK}",
                f"buffer_load_dword v{T1}, v{VFL}, {sr(sWS,4)}, s{sT2} offen sc1"]
    def kv_poll(ch):
        lock("T1")
        if ch == 2: e(f"v_bfe_u32 v{T1}, v{AK}, 6, 3"); e(f"v_lshl_add_u32 v{VFL}, v{T1}, 15, v{VFL}")
        poll_issue(("kp",ch), KVM[ch], kv_poll_txt(ch))
    def kv_pick(ch):
        unlock("T1")
        k.wait(vm=[("kp",ch)])
        spin_global("kv", KVM[ch], kv_poll_txt(ch))
        k.provide(f"kvflag{ch}")
    def kv_dma(ch, q):
        def f():
            k.require(f"kvflag{min(ch,2)}")
            if ch >= 3: k.require(f"all:done_KV{ch-3}")
            k.provide(f"kvi{ch}_{q}")
            if q == 0:
                setm0(sWQO, (ch%3)*KVS)
                e(f"s_add_u32 s{sT2}, s{sR}, {ch}"); e(f"s_and_b32 s{sT2}, s{sT2}, 7"); e(f"s_lshl_b32 s{sT2}, s{sT2}, 14"); e(f"s_add_u32 s{sKVO}, s{sT2}, s{sKVW}")
            dma(("kvd",ch), AK, sWS, f"s{sKVO}", sWQO, (ch%3)*KVS, imm=1024*q, sc1=True)
        if q: f.pre = lambda: setm0(sWQO, (ch%3)*KVS)
        return f
    GD = c["gd"]
    GWB = lambda i: O + 4*(i%GD)
    PA = 61; ON = 48
    for i in range(GD): wread(i, GWB(i))
    GQ = {}
    def gq(s_, f): GQ.setdefault(s_, []).append(f)
    def pads():
        e("s_mov_b64 exec, 1")
        for x in range(3): k.lds("pad", f"ds_write_b128 v{PA}, {vr(ON,4)} offset:{x*KVS+2048}")
        e("s_mov_b64 exec, -1")
    gq(1, pads)
    def pub1(): stamp("win"); k.wait(vm=["st"]); stamp("win"); flag_store(1)
    gq(c["k_flag"], pub1)
    for x in range(4): gq(c["k_flag"]+1+c.get("k_ustep",2)*x, w_dma("U",x))
    gq(c["k_poll"], lambda: kv_poll(0))
    def first_kv():
        stamp("win"); kv_pick(0); stamp("win"); kv_dma(0,0)(); kv_dma(0,1)()
        k.vm("q", f"buffer_load_dwordx4 {vr(Q,4)}, v{AK}, {sr(sWS,4)}, s{sCB} offen sc1")
        kv_poll(1)
    gq(c["k_chk"], first_kv)
    def second_kv():
        kv_pick(1); kv_dma(1,0)(); kv_dma(1,1)()
    gq(c["k_chk1"], second_kv)
    for x, s_ in enumerate(c.get("k_m", [])): gq(s_, w_dma("M",x))
    vq = []
    gate_code(vq.append); ngate = len(vq)
    vq += sig_seq(list(range(GA,GA+16)))
    for s_ in range(64):
        acc = GA if s_ < 32 else GB
        if s_ in c.get("gst",[]): stamp("gst")
        if c.get("gprio") and s_ % 8 == 0: e(f"s_setprio {3-(s_%32)//8}")
        k.wait(lds=[("w",s_)])
        e(f"v_mfma_f32_32x32x16_bf16 {vr(acc,16)}, {vr(GWB(s_),4)}, {ar(4*(s_%32),4)}, {'0' if s_%32==0 else vr(acc,16)}")
        if s_ == 32-GD:
            stamp("win"); k.require("WiU3"); k.wait(vm=[("W","U")]); e("s_barrier"); k.provide("all:fill_U"); stamp("win")
        if s_+GD < 64: wread(s_+GD, GWB(s_))
        for f_ in GQ.get(s_, []): f_()
        if 2 <= s_ < 2+ngate: e(vq.pop(0))
        elif s_ >= 33:
            n_ = -(-len(vq)//(63-s_)) if s_ < 63 else len(vq)
            for _ in range(n_): e(vq.pop(0))
        if s_ == 31: stamp()
    e(f"s_cmp_eq_u32 s{sROLE}, 3"); e("s_cbranch_scc1 L_fepi2")
    k.raw("L_join2:")
    e(f"s_add_u32 s3, s{sNT}, 2"); e("s_lshl_b32 s3, s3, 11"); e(f"s_add_u32 s{sXO}, s3, s{sCA}"); e(f"s_add_u32 s{sWQ2}, s{sXO}, {14*2048}")
    for i in range(16): e(f"v_mov_b32 v{O+i}, 0")
    stamp("win"); k.wait(vm=["q"]); stamp("win")
    k.wait_all(lds=True, vm=False)
    e("s_barrier")
    k.provide("all:fill_KV0", "all:done_U", "all:done_G")
    stamp(); stamp("win")

    kvo = lambda t: ((t>>3)%3)*KVS + (t&7)*KVT
    def rK(t):
        if t > 63: return
        k.require(f"all:fill_KV{t>>3}"); k.provide(f"krd{t}")
        k.lds(("k",t), f"ds_read_b128 {vr(KF,4)}, v{AK} offset:{kvo(t)}")
    def rV(t, f):
        if t > 63: return
        k.require(f"all:fill_KV{t>>3}")
        k.lds(("v",f,t), f"ds_read_b128 {vr(VF+4*f,4)}, v{AV1 if f else AV0} offset:{kvo(t)}")
        if f == 1 and t % 8 == 7: k.provide(f"done_KV{t>>3}")
    Sb = lambda t: SA if t % 2 == 0 else SB
    def QK(t):
        k.require(f"krd{t}"); k.wait(lds=[("k",t)])
        e(f"v_mfma_f32_32x32x16_bf16 {vr(Sb(t),16)}, {vr(KF,4)}, {vr(Q,4)}, 0")
    def PV(t, f):
        k.wait(lds=[("v",f,t)])
        e(f"v_smfmac_f32_32x32x32_bf16 {vr(O,16)}, {vr(VF+4*f,4)}, {vr(Sb(t)+8*f,8)}, v{IDX}")
    rK(0); rV(0,0)
    for i in range(8): e(f"v_pk_mul_f32 {vr(GB+2*i,2)}, {vr(GA+2*i,2)}, {vr(GB+2*i,2)}")
    QK(0); rK(1)
    for i in range(8): e(f"v_cvt_pk_bf16_f32 v{GB+i}, v{GB+2*i}, v{GB+2*i+1}")
    side = []
    vside = []
    now = [0.0]
    def at(t, fn): side.append([t, fn]); side.sort(key=lambda x: x[0])
    def gu_op(i):
        def f():
            nm = names[i//32]; s_ = i % 32
            acc = GA
            k.require(f"wrd{i}"); k.wait(lds=[("w",i)])
            e(f"v_mfma_f32_32x32x16_bf16 {vr(acc,16)}, {vr(WB+4*(i%NWB),4)}, {ar(4*s_,4)}, {'0' if s_==0 else vr(acc,16)}")
            if nm == "M": k.provide(f"xdead{s_}")
            wread(i+NWB)
            if s_ == 31: mixed(now[0]+0.7)
        return f
    def mixed(t0):
        seq = sig_seq(list(range(GA,GA+8)))
        seq += [f"v_pk_mul_f32 {vr(GA+2*i,2)}, {vr(GA+2*i,2)}, {vr(GA+8+2*i,2)}" for i in range(4)]
        seq += [f"v_cvt_pk_bf16_f32 v{GA+i}, v{GA+2*i}, v{GA+2*i+1}" for i in range(4)]
        for n, txt in enumerate(seq):
            def f(txt=txt, last=(n == len(seq)-1)):
                e(txt)
                if last:
                    def st():
                        e(f"s_and_b32 s3, s{sNT}, 1"); e("s_mul_i32 s3, s3, 14"); e(f"s_lshr_b32 s{sT}, s{sNT}, 1"); e(f"s_add_u32 s3, s3, s{sT}"); e("s_add_u32 s3, s3, 10")
                        e("s_lshl_b32 s3, s3, 11"); e(f"s_add_u32 s{sXO}, s3, s{sCA}")
                        k.vm(("h",1), f"buffer_store_dwordx4 {vr(GA,4)}, v{AK}, {sr(sWS,4)}, s{sXO} offen sc1")
                        k.provide("hst1")
                    def fl():
                        k.require("hst1"); k.wait(vm=[("h",1)]); flag_store(3)
                    at(now[0], st); at(now[0]+3.0, fl)
            vside.append((t0 + c.get("mspan",3.0)*n/len(seq), f))
    pos = {i: i % 4 for i in range(14)}
    nxt = [4, 5] + [(14-ND-2+x) % 4 for x in range(2)] if ND else None
    if ND:
        assert ND == 2
        pos[14], pos[15], pos[16], pos[17] = 4, 5, (10 % 4), (11 % 4)
        prev = {14: None, 15: None, 16: 10, 17: 11}
    else:
        for i in range(14,18): pos[i] = i % 4
        prev = {i: i-4 for i in range(14,18)}
    for i in range(14): prev[i] = i-4 if i >= 4 else None
    pbyte = lambda i: ((pos[i]+4) % 6)*2048
    def wd_dma(i, q):
        def pre(): setm0(sWB, pbyte(i))
        def f():
            k.require(["all:done_G","all:done_U","all:done_M"][pos[i]//2], "vwg")
            if prev[i] is not None: k.require(f"dw_used{prev[i]}")
            if q == 0 and i > 0: k.require(f"wdi{i-1}_1")
            k.provide(f"wdi{i}_{q}")
            dma(("wd",i), VWG2 if q else VWG, sWD if i < 14 else sWO, f"s{sWDO}", sWB, pbyte(i), imm=1024*q)
            if q == 1:
                if i == 13:
                    e(f"s_lshl_b32 s{sWDO}, s{sW}, 16"); e(f"s_lshl_b32 s3, s{sNT}, 7"); e(f"s_add_u32 s{sWDO}, s{sWDO}, s3")
                elif i == 1: e(f"s_sub_u32 s{sWDO}, s{sWDO}, {18*16384}")
                elif i == 9: e(f"s_add_u32 s{sWDO}, s{sWDO}, {6*16384}")
                elif i < 17: e(f"s_add_u32 s{sWDO}, s{sWDO}, {32768 if i < 14 else 16384}")
        f.pre = pre
        return f
    def h_load(i, mi):
        def f():
            k.require("hflag2" if i < 10 else "hflag3", f"xdead{2*(i%4)+mi}")
            if i >= 4: k.require(f"dstep{i-4}")
            if mi == 0 and i > 0: k.require(f"hli{i-1}_1")
            k.provide(f"hli{i}_{mi}")
            k.vm(("hl",i), f"buffer_load_dwordx4 {ar(8*(i%4)+4*mi,4)}, v{AK}, {sr(sWS,4)}, s{sHOL} offen offset:{(i&1)*2048+mi*1024} sc1")
            if mi == 1 and (i & 1): e(f"s_add_u32 s{sHOL}, s{sHOL}, 4096")
        return f
    def d_read(i, j, dst=None):
        ni, q = j>>1, j&1
        k.require("xdead11", "vwd")
        if j == 0: k.wait(vm=[("wd",i)])
        d = dst if dst else ar(32+8*(i%2)+4*ni+2*q, 2)
        k.require(f"wdi{i}_1"); k.provide(f"drd{i}_{j}")
        k.lds(("dw",i,ni), f"ds_read_b64_tr_b16 {d}, v{AWB if ni else AWA} offset:{pbyte(i)+q*1024}")
    wq_ = {i: [i+4] for i in range(14)} if not ND else {**{i: [i+4] for i in range(10)}, 10: [14,16], 11: [15,17], 12: [], 13: []}
    if ND: wq_[9] = [13,14]; wq_[10] = [15,16]; wq_[11] = [17]
    def d_op(i, j):
        ops = []
        hd = c["hd"]
        def f():
            ni, mi = j>>1, j&1
            k.require("xdead31", f"drd{i}_3", f"hli{i}_1")
            k.wait(lds=[("dw",i,ni)], vm=([("hl",i)] + ([("wd",i+1)] if i < 13 else [])) if j == 0 else [])
            acc = ar(64+16*(2*mi+ni),16)
            e(f"v_mfma_f32_32x32x16_bf16 {acc}, {ar(8*(i%4)+4*mi,4)}, {ar(32+8*(i%2)+4*ni,4)}, {'0' if i==0 else acc}")
            if i < 13: d_read(i+1, j)
            if j == 2: k.provide(f"dw_used{i}")
            if j == 3: k.provide(f"dstep{i}")
            if j < 2 and i+hd < 14: h_load(i+hd, j)()
            if j >= 2 and wq_[i]: wd_dma(wq_[i][0], j-2)()
            if j == 3:
                for x in wq_[i][1:]:
                    at(now[0]+0.05, wd_dma(x,0)); at(now[0]+0.06, wd_dma(x,1))
        if j == 2 and wq_[i]: f.pre = wd_dma(wq_[i][0], 0).pre
        return f
    gops = [gu_op(i) for i in range(64,96)] + [d_op(i,j) for i in range(14-ND) for j in range(4)]
    seg = c["seg"]
    def spread(n, T): return [ (n*(x+1))//T - (n*x)//T for x in range(T) ]
    ng = [0]*seg[0] + spread(32,seg[1])
    tM = seg[0]; GT = tM+seg[1]
    ng += spread(56-4*ND, 64-GT)
    assert sum(ng) == len(gops) and max(ng) <= 4, ng
    nep = [0]; curprio = [0]
    def epoch(ts, tc, pre=None, post=None):
        row = nep[0]; nep[0] += 1; assert row < 16
        snap = set()
        def sig():
            if pre: pre()
            snap.update(x for x in k.have if x.startswith(("fill_","done_")))
            k.lds(("sig",row), f"ds_write_b32 v{PW}, v{PW} offset:{32*row}")
        def rd(): lock("T0"); k.lds(("chk",row), f"ds_read_b32 v{T0}, v{PR} offset:{32*row}")
        def chk():
            unlock("T0")
            k.wait(lds=[("chk",row)])
            back = k.label("ep_b"); slow = k.label("ep_s")
            e(f"v_cmp_eq_u32 vcc, 0, v{T0}"); e(f"s_cbranch_vccnz {slow}"); k.raw(back+":")
            k.ool.append("\n".join([slow+":", f"    s_mov_b32 s{sCNT}, {c['spin']*16}", "    s_setprio 0", slow+"_l:",
                f"    ds_read_b32 v{T0}, v{PR} offset:{32*row}", "    s_waitcnt lgkmcnt(0)", f"    v_cmp_eq_u32 vcc, 0, v{T0}", "    s_nop 1",
                f"    s_cbranch_vccz {slow}_x", f"    s_sub_u32 s{sCNT}, s{sCNT}, 1", f"    s_cmp_lg_u32 s{sCNT}, 0", f"    s_cbranch_scc1 {slow}_l",
                slow+"_x:", f"    s_setprio {curprio[0]}", f"    s_branch {back}"]))
            k.provide(*("all:"+x for x in snap))
            if post: post()
        at(ts, sig); at(tc-0.3, rd); at(tc, chk)
    def kv_fetch(ch, tpoll, tdma):
        if ch <= 2:
            at(tpoll, lambda: kv_poll(ch)); at(tdma-0.01, lambda: kv_pick(ch))
        at(tdma, kv_dma(ch,0)); at(tdma+0.2, kv_dma(ch,1))
    def kv_landed(ch):
        def f(): k.require(f"kvi{ch}_1"); k.wait(vm=[("kvd",ch)]); k.provide(f"fill_KV{ch}")
        return f
    hld = f"buffer_load_dword v{T1}, v{VFL}, {sr(sWS,4)}, s{sFK} offen sc1"
    def h_flag(stage, tpoll, tchk):
        def poll():
            lock("T1"); k.require("vwg")
            if stage > 1: k.require(f"hflag{stage-1}")
            if stage in (2,3): e(f"s_add_u32 s{sFK}, s{sFK}, 0x40000")
            poll_issue(("hp",stage), 0xffff if stage < 4 else 0xff, [hld])
        def chk():
            unlock("T1")
            k.wait(vm=[("hp",stage)])
            spin_global("ho", 0xffff if stage < 4 else 0xff, [hld])
            k.provide(f"hflag{stage}")
        if tpoll is None: poll(); chk()
        else: at(tpoll, poll); at(tchk, chk)
    nm_ = len(c.get("k_m", []))
    for x in range(nm_, 4): at(c.get("t_m",1.2)+c.get("t_ms",0.6)*(x-nm_), w_dma("M",x))
    def hst(j):
        def f():
            k.vm(("h",0), f"buffer_store_dwordx4 {vr(GB+4*j,4)}, v{AK}, {sr(sWS,4)}, s{sWQ2 if j else sXO} offen sc1"); k.provide(f"hst0{j}")
        return f
    th = c.get("t_h", 0.0)
    def poison():
        for i in range(4): e(f"v_mov_b32 v{GB+8+i}, -1")
        k.vm(("h",1), f"buffer_store_dwordx4 {vr(GB+8,4)}, v{AK}, {sr(sWS,4)}, s{sHOS} offen sc1")
    if c["poison"]:
        at(c.get("t_po", 9.0), poison)
        if c["e_lead"] > 1: at(64-c["e_lead"]/2, lambda: flag_store(4))
    at(th, hst(0)); at(th+c.get("t_hs",0.01), hst(1))
    def fl2(): k.require("hst01"); k.wait(vm=[("h",0)]); flag_store(2)
    at(th+3.4, fl2)
    def m_landed():
        if tM <= 6: kv_landed(1)()
        k.require("WiM3"); k.wait(vm=[("W","M")]); k.provide("fill_M")
    def m_first():
        for i in range(NWB): wread(64+i)
    if tM > 6: epoch(1.0, 5.0, kv_landed(1))
    epoch(tM-c.get("t_me",1.3), tM-0.2, m_landed, m_first)
    kv_fetch(2, c.get("t_p2",3.7), c.get("t_d2",6.2))
    epoch(9.5, 12.5, kv_landed(2))
    kv_fetch(3, 10.6, 12.8)
    if c["pf"]: at(c.get("t_pf",7.0), touch([sWD], 7)); at(c.get("t_pf",7.0)+0.3, touch([sWO], 2))
    epoch(17.5, 21.0, kv_landed(3))
    kv_fetch(4, 0, 21.2)
    def vwg():
        k.require("WiM3", "kvflag2"); lock("T0"); unlock("T0")
        e(f"v_bfe_u32 v{T0}, v{AK}, 8, 1"); e(f"v_lshlrev_b32 v{T0}, 6, v{T0}")
        e(f"v_and_b32 v{VFL}, 0x70, v{AK}"); e(f"v_xor_b32 v{VWG}, v{VFL}, v{T0}")
        e(f"v_lshrrev_b32 v{T0}, 7, v{AK}"); e(f"v_lshl_add_u32 v{VWG}, v{T0}, 10, v{VWG}"); e(f"v_add_u32 v{VWG2}, {8192-1024}, v{VWG}")
        e(f"v_bfe_u32 v{T0}, v{AK}, 7, 1"); e(f"v_lshlrev_b32 v{VFL}, 3, v{VFL}"); e(f"v_lshl_add_u32 v{VFL}, v{T0}, 12, v{VFL}")
        e(f"s_lshr_b32 s3, s{sW}, 1"); e("s_lshl_b32 s3, s3, 10"); e(f"s_lshl_b32 s{sFK}, s{sMT}, 13"); e(f"s_add_u32 s{sFK}, s{sFK}, s3")
        k.provide("vwg")
    def vwd():
        k.require("done_U"); lock("T0"); unlock("T0")
        e(f"v_bfe_u32 v{T0}, v{AK}, 8, 1"); e(f"v_lshlrev_b32 v{AWA}, 5, v{T0}")
        e(f"v_bfe_u32 v{T0}, v{AK}, 6, 2"); e(f"v_lshl_add_u32 v{AWA}, v{T0}, 7, v{AWA}")
        e(f"v_and_b32 v{T0}, 0x200, v{AK}"); e(f"v_add_u32 v{AWA}, v{T0}, v{AWA}")
        e(f"v_bfe_u32 v{T0}, v{AK}, 4, 2"); e(f"v_lshl_add_u32 v{AWA}, v{T0}, 3, v{AWA}")
        e(f"v_bfe_u32 v{T0}, v{AK}, 7, 1"); e(f"v_lshl_add_u32 v{AWA}, v{T0}, 6, v{AWA}")
        e(f"v_xor_b32 v{AWB}, 64, v{AWA}")
        e(f"v_add_u32 v{AWA}, s{sWB}, v{AWA}"); e(f"v_add_u32 v{AWB}, s{sWB}, v{AWB}")
        k.provide("vwd")
    at(8.5, vwg); at(0.5, vwd)
    epoch(max(25.5,GT), 29.0, kv_landed(4))
    kv_fetch(5, 0, 29.2)
    for i in range(4):
        for q in range(2): at(max(GT-8, 10)+1.2*i+0.4*q, wd_dma(i,q))
    h_flag(1, 9.8, 11.4)
    h_flag(2, GT-5.6, GT-4.0)
    for i in range(c["hd"]):
        for mi in range(2): at(GT-3.0+1.0*i+0.4*mi, h_load(i,mi))
    for j in range(4): at(GT-1.4+0.25*j, lambda j=j: d_read(0,j))
    epoch(33.5, 37.0, kv_landed(5))
    kv_fetch(6, 0, 37.2)
    epoch(41.5, 45.0, kv_landed(6))
    tl = GT + (10-c["hd"])*4*(64-GT)/(56-4*ND)
    kv_fetch(7, 0, 45.2)
    epoch(49.5, 53.0, kv_landed(7))
    h_flag(3, tl-2.4, tl-0.9)

    abl0 = len(k.ins)
    k.keep = c.get("keep", 15)
    gi = 0
    ORD = {0:["PV2","QK","PV1"], 1:["PV2","QK","PV1","G"], 2:["PV2","QK","G","PV1","G"], 3:["PV2","QK","G","PV1","G","G"], 4:["PV2","G","QK","G","PV1","G","G"]}
    for t in range(64):
        if t % 8 in c["prio"]:
            curprio[0] = c["prio"][t%8]; e(f"s_setprio {curprio[0]}")
        if t in (tM,GT,40,52): stamp()
        if "tiles" in c and t in range(*c["tiles"]): stamp("tiles")
        S = Sb(t)
        ms = ORD[ng[t]]; n = len(ms); posn = {}
        for x, m in enumerate(ms):
            p = int(round(2 + 16*x/n)) % 16
            if m == "PV1": p = max(p, 10)
            if m == "QK": p = min(p, 5 if n <= 4 else 7)
            posn.setdefault(p, []).append(m)
        for p in range(16):
            now[0] = t + p/16
            for m in posn.get(p, []):
                g_ = gops[gi] if m == "G" else None
                if g_ is not None and hasattr(g_, "pre"): g_.pre()
                elif side and side[0][0] <= now[0] and hasattr(side[0][1], "pre") and not (g_ is not None and gi >= 32): side[0][1].pre()
                if m == "PV2":
                    if t > 0: PV(t-1, 1)
                    rV(t, 1)
                elif m == "QK":
                    if t < 63: QK(t+1)
                    rK(t+2)
                elif m == "PV1":
                    PV(t, 0); rV(t+1, 0)
                else:
                    g_(); gi += 1
                ns = 1 if (m == "G" and gi > 32) else 0
                while side and side[0][0] <= now[0] - 0.35*ns:
                    side.pop(0)[1](); ns += 1
            while vside and vside[0][0] <= now[0]:
                vside.pop(0)[1]()
            e(f"v_exp_f32 v{S+p}, v{S+p}")
    assert not vside and gi == len(gops), (side, vside)
    k.keep = 15
    e("s_setprio 3")
    PV(63, 1)
    while side: side.pop(0)[1]()
    abl = c.get("abl", "").split(",")
    if abl != [""]:
        keep = []
        import re as _re
        for ins in k.ins[abl0:]:
            t_ = ins.text
            if "vmwait" in abl and ins.op == "s_waitcnt" and "vmcnt" in t_:
                t2 = _re.sub(r"vmcnt\(\d+\) ?", "", t_).strip()
                if t2 == "s_waitcnt": continue
                ins = Ins(t2)
            if "vmem" in abl and ins.kind == "vmem" and not ("store_dword " in t_): continue
            if "branch" in abl and ins.op.startswith("s_cbranch"): continue
            if "prio" in abl and ins.op == "s_setprio": continue
            if "salu" in abl and ins.kind == "salu" and ins.op.startswith(("s_add","s_and","s_lshl","s_mul","s_lshr")): continue
            if "sig" in abl and ins.kind == "valu" and ins.w and ins.w[0][0] == "v" and GA <= ins.w[0][1] < WB: continue
            keep.append(ins)
        k.ins[abl0:] = keep
        e("s_waitcnt vmcnt(0) lgkmcnt(0)")
    stamp()
    if c["poison"] and c["e_lead"] == 1: flag_store(4)
    lo, hi = (2.0**-40, 2.0**40) if not c["force_fb"] else (2.0**40, 2.0**41)
    e(f"s_mov_b32 s{sT}, {hex(f2u(lo))}"); e(f"s_mov_b32 s{sT2}, {hex(f2u(hi))}")
    e(f"v_mov_b32 v{O+9}, v{O+8}"); e(f"v_permlane32_swap_b32 v{O+8}, v{O+9}")
    e(f"v_cmp_le_f32 s[98:99], s{sT}, v{O+8}")
    e(f"v_cmp_ge_f32 vcc, s{sT2}, v{O+8}"); e(f"s_and_b64 vcc, vcc, s[98:99]")
    e("s_cmp_eq_u64 vcc, -1"); e("s_cbranch_scc0 L_fallback")
    k.raw("L_fb_back:")
    e(f"v_rcp_f32 v{T0}, v{O+8}"); e(f"v_mul_f32 v{T0}, v{T0}, v{VG}")
    for i in range(8): e(f"v_mul_f32 v{O+i}, v{O+i}, v{T0}")
    for i in range(4): e(f"v_cvt_pk_bf16_f32 v{O+i}, v{O+2*i}, v{O+2*i+1}")
    if c["poison"]:
        for i in range(4): e(f"v_min_u32 v{O+i}, -2, v{O+i}")
    k.vm("o", f"buffer_store_dwordx4 {vr(O,4)}, v{AK}, {sr(sWS,4)}, s{sHOS} offen sc1")
    if c["poison"] and c["e_lead"] == 0: flag_store(4)
    e("s_setprio 0")
    worder = [(i,j) for i in range(14,18) for j in range(4)]
    def wo_reads(n):
        for _ in range(n):
            if worder:
                i, j = worder.pop(0); d_read(i, j, vr(GA+8*(i-14)+2*j, 2))
    for i in range(14-ND, 14):
        for j in range(4):
            d_op(i,j)(); wo_reads(1 if i < 13 else 2)
    if not c["poison"]: k.wait(vm=["o"]); flag_store(4)
    wo_reads(16)
    RR = WB
    e(f"v_lshrrev_b32 v0, 8, v{AK}"); e(f"v_and_b32 v{T0}, 0xf0, v{AK}"); e(f"v_lshl_add_u32 v{RR}, v0, 11, v{T0}")
    e(f"s_lshr_b32 s3, s{sW}, 2"); e("s_lshl_b32 s3, s3, 16"); e(f"s_and_b32 s{sT}, s{sW}, 3"); e(f"s_lshl_b32 s{sT}, s{sT}, 13"); e(f"s_add_u32 s3, s3, s{sT}")
    e(f"v_add_u32 v{RR}, s3, v{RR}")
    e(f"v_bfe_u32 v{T0}, v{AK}, 7, 1"); e(f"v_lshl_add_u32 v0, v{T0}, 2, v0"); e(f"v_bfe_u32 v{T0}, v{AK}, 4, 3"); e(f"v_lshlrev_b32 v{T0}, 3, v{T0}")
    e(f"v_lshl_add_u32 v{RR+1}, v0, 10, v{T0}")
    e(f"s_lshl_b32 s{sXO}, s{sMT}, 16"); e(f"s_lshl_b32 s3, s{sW}, 13"); e(f"s_add_u32 s{sXO}, s{sXO}, s3"); e(f"s_lshl_b32 s3, s{sNT}, 7"); e(f"s_add_u32 s{sXO}, s{sXO}, s3")
    e(f"v_and_b32 v{VFL}, 0x30, v{AK}"); e(f"v_lshlrev_b32 v{VFL}, 3, v{VFL}"); e(f"v_bfe_u32 v{T0}, v{AK}, 6, 1"); e(f"v_lshl_add_u32 v{VFL}, v{T0}, 12, v{VFL}")
    e(f"s_lshl_b32 s3, s{sW}, 9"); e(f"s_lshl_b32 s{sFK}, s{sMT}, 13"); e(f"s_add_u32 s{sFK}, s{sFK}, s3"); e(f"s_add_u32 s{sFK}, s{sFK}, 0xc0000")
    e(f"s_mul_i32 s{sHOL}, s{sMT}, {HO_T}"); e(f"s_lshl_b32 s3, s{sW}, 13"); e(f"s_add_u32 s{sHOL}, s{sHOL}, s3"); e(f"s_add_u32 s{sHOL}, s{sHOL}, {WS_HO+112*2048}")
    e(f"s_add_u32 s{sT}, s{sHOL}, 4096")
    e(f"s_lshl_b32 s{sWDO}, s{sW}, 8"); setm0(sWDO, 0)
    k.wait_all(lds=True, vm=False)
    e("s_barrier")
    stamp()
    h_flag(4, None, None)
    stamp()
    OF = SA
    old = lambda i, mi: f"buffer_load_dwordx4 {vr(OF+8*i+4*mi,4)}, v{AK}, {sr(sWS,4)}, s{sHOL if i < 2 else sT} offen offset:{(i&1)*2048+mi*1024} sc1"
    for i in range(4):
        for mi in range(2):
            k.vm(("ol",i), old(i,mi))
    for i in range(4):
        k.wait(vm=[("ol",i)])
        if c["poison"]:
            a_ = OF+8*i
            test = [f"v_max3_u32 v{T0}, v{a_}, v{a_+1}, v{a_+2}", f"v_max3_u32 v{T1}, v{a_+3}, v{a_+4}, v{a_+5}", f"v_max3_u32 v{T0}, v{T0}, v{a_+6}, v{a_+7}",
                    f"v_max_u32 v{T0}, v{T0}, v{T1}", f"v_cmp_eq_u32 vcc, -1, v{T0}"]
            back = k.label("ov_b"); slow = k.label("ov_s")
            for t_ in test: e(t_)
            e(f"s_cbranch_vccnz {slow}"); k.raw(back+":")
            k.ool.append("\n".join([slow+":", f"    s_mov_b32 s{sCNT}, {c['spin']}", slow+"_l:", "    "+old(i,0), "    "+old(i,1), "    s_waitcnt vmcnt(0)"]
                + ["    "+t_ for t_ in test] + ["    s_nop 1", f"    s_cbranch_vccz {back}", f"    s_sub_u32 s{sCNT}, s{sCNT}, 1", f"    s_cmp_lg_u32 s{sCNT}, 0", f"    s_cbranch_scc1 {slow}_l", f"    s_branch {back}"]))
        for j in range(4):
            mi, ni = j>>1, j&1
            acc = ar(64+16*(2*mi+ni),16)
            e(f"v_mfma_f32_32x32x16_bf16 {acc}, {vr(OF+8*i+4*mi,4)}, {vr(GA+8*i+4*ni,4)}, {acc}")
    for r_ in range(64):
        if r_ == 32: setm0(sWDO, 63616); e("s_nop 0")
        k.lds("rw", f"ds_write_addtid_b32 {ar(64+r_)} offset:{r_*2048 if r_ < 32 else (r_-32)*2048+1920}")
    k.wait_all(lds=True, vm=False)
    e("s_barrier")
    stamp()
    RD = 32
    for p in range(8):
        for x in range(2):
            k.lds(("rr",p), f"ds_read_b128 {vr(RD+8*p+4*x,4)}, v{RR} offset:{x*32768+p*256}")
    for p in range(1,8):
        k.wait(lds=[("rr",p)])
        for i in range(4): e(f"v_pk_add_f32 {vr(RD+2*i,2)}, {vr(RD+2*i,2)}, {vr(RD+8*p+2*i,2)}")
    for i in range(4): e(f"v_cvt_pk_bf16_f32 v{RD+i}, v{RD+2*i}, v{RD+2*i+1}")
    for x in range(2):
        k.vm("out", f"buffer_store_dwordx2 {vr(RD+2*x,2)}, v{RR+1}, {sr(sOUT,4)}, s{sXO} offen offset:{64*x} {c['outmod']}")
    if "diag_pad" in c: k.wait_all(); stamp("end")
    if c["stamps"]:
        k.wait_all(); stamp("end")
        e("s_memrealtime s[98:99]"); e("s_waitcnt lgkmcnt(0)")
        e(f"s_lshl_b32 s3, s2, 3"); e(f"s_add_u32 s3, s3, s{sW}"); e("s_lshl_b32 s3, s3, 7"); e(f"s_add_u32 s3, s3, {WS_ST}")
        vals = ["s100","s98","s101"] + [f"s{sST+i}" for i in range(nst[0])]
        for i, v in enumerate(vals):
            e(f"v_mov_b32 v{T0}, {v}"); e(f"buffer_store_dword v{T0}, off, {sr(sWS,4)}, s3 offset:{4*i}")
    k.raw("L_end:")
    e("s_endpgm")
    f = K(); g = f.e
    f.raw("L_fallback:")
    g("s_waitcnt vmcnt(0) lgkmcnt(0)")
    MX = T0; CN = SB
    g(f"v_mov_b32 v{MX}, 0xff800000"); g(f"s_mov_b32 s{sT2}, s{sKVH}"); g(f"s_mov_b32 s{sCNT}, 64")
    f.raw("L_fb1:")
    g(f"buffer_load_dwordx4 {vr(KF,4)}, v{AK}, {sr(sWS,4)}, s{sT2} offen sc1"); g("s_waitcnt vmcnt(0)")
    g(f"v_mfma_f32_32x32x16_bf16 {vr(SA,16)}, {vr(KF,4)}, {vr(Q,4)}, 0")
    for i in range(8): g(f"v_max3_f32 v{MX}, v{MX}, v{SA+2*i}, v{SA+2*i+1}")
    g(f"s_add_u32 s{sT2}, s{sT2}, 2048"); g(f"s_sub_u32 s{sCNT}, s{sCNT}, 1"); g(f"s_cmp_lg_u32 s{sCNT}, 0"); g("s_cbranch_scc1 L_fb1")
    g(f"v_mov_b32 v{T1}, v{MX}"); g(f"v_permlane32_swap_b32 v{MX}, v{T1}"); g(f"v_max_f32 v{MX}, v{MX}, v{T1}")
    for i in range(16): g(f"v_sub_f32 v{CN+i}, 0, v{MX}")
    for i in range(16): g(f"v_mov_b32 v{O+i}, 0")
    for i in range(8): g(f"v_mov_b32 v{VF+i}, 0x3f803f80")
    g(f"s_mov_b32 s{sT2}, s{sKVH}"); g(f"s_mov_b32 s{sCNT}, 64")
    f.raw("L_fb2:")
    g(f"buffer_load_dwordx4 {vr(KF,4)}, v{AK}, {sr(sWS,4)}, s{sT2} offen sc1")
    g("s_mov_b32 exec_lo, 0xffff"); g("s_mov_b32 exec_hi, 0xffff")
    g(f"buffer_load_dwordx4 {vr(VF,4)}, v{AV0}, {sr(sWS,4)}, s{sT2} offen sc1")
    g(f"buffer_load_dwordx4 {vr(VF+4,4)}, v{AV1}, {sr(sWS,4)}, s{sT2} offen sc1")
    g("s_mov_b64 exec, -1"); g("s_waitcnt vmcnt(0)")
    g(f"v_mfma_f32_32x32x16_bf16 {vr(SA,16)}, {vr(KF,4)}, {vr(Q,4)}, {vr(CN,16)}")
    for i in range(16): g(f"v_exp_f32 v{SA+i}, v{SA+i}")
    g(f"v_smfmac_f32_32x32x32_bf16 {vr(O,16)}, {vr(VF,4)}, {vr(SA,8)}, v{IDX}")
    g(f"v_smfmac_f32_32x32x32_bf16 {vr(O,16)}, {vr(VF+4,4)}, {vr(SA+8,8)}, v{IDX}")
    g(f"s_add_u32 s{sT2}, s{sT2}, 2048"); g(f"s_sub_u32 s{sCNT}, s{sCNT}, 1"); g(f"s_cmp_lg_u32 s{sCNT}, 0"); g("s_cbranch_scc1 L_fb2")
    g("s_nop 15"); g("s_branch L_fb_back")

    hdr = open("cdna_kernels/%s.s.ref" % NAME).read().split("; Override launch geometry")[0]
    out = hdr + f"; @launch grid=(256,1,1) block=(512,1,1) lds={LDS_BYTES}\n"
    out += f""".amdgcn_target "amdgcn-amd-amdhsa--gfx950"
.text
.globl {NAME}_kernel
.p2align 8
.type {NAME}_kernel,@function
{NAME}_kernel:
"""
    out += k.text() + "\n" + kv_.text() + "\n" + "\n".join(k.ool) + "\n" + f.text() + f"""
L_code_end:
; unreachable filler so that the 32 KiB instruction prefetch window stays inside the section
.fill (33280 - (L_code_end - {NAME}_kernel)) / 4, 4, 0xbf810000
.section .rodata,"a"
.p2align 6
.amdhsa_kernel {NAME}_kernel
  .amdhsa_next_free_vgpr 256
  .amdhsa_next_free_sgpr 102
  .amdhsa_accum_offset 256
  .amdhsa_group_segment_fixed_size 0
  .amdhsa_kernarg_size 88
  .amdhsa_user_sgpr_count 2
  .amdhsa_user_sgpr_kernarg_segment_ptr 1
  .amdhsa_system_sgpr_workgroup_id_x 1
.end_amdhsa_kernel
"""
    sys.stderr.write(f"instrs {len(k.ins)} nops {k.nops} ng {''.join(map(str,ng))}\n")
    return out

if __name__ == "__main__":
    import json
    cfg = json.loads(sys.argv[2]) if len(sys.argv) > 2 else {}
    if "prio" in cfg: cfg["prio"] = {int(a): b for a, b in cfg["prio"].items()}
    open(sys.argv[1], "w").write(gen(cfg))
```

```python
import sys, math, struct
from asmlib import *

NAME = "gated_mix__mha_block__glu_gated_glu__prompt"
LOG2E = 1.4426950408889634
def f2u(x): return struct.unpack("<I", struct.pack("<f", x))[0]

KVT = 2064; KVS = 8*KVT
GW_L = 49664; PROG = 50688; RA = 51200; WV = 12288
JUNK = GW_L
LDS_BYTES = RA + 8*WV + 256
WS_KV = 0x100000; WS_HO = 0x500000; HO_T = 144*2048; WS_ST = 0x1000000; WS_Q = 0x1100000; WS_Z = 0x1500000; WS_SZ = 0x2000000
IDX = 0
AK,AV0,AV1,AWA,AWB,VC,VG,PW,PR,T0,T1,VWG,VFL,VD0,VD1 = range(1,16)
Q=16; KF=20; VF=24; SA=32; SB=48; O=64; GA=80; GB=96; WB=112; TT=124
VWG2 = TT; VWM = TT+1
sX,sWA,sWO,sWG,sWU,sWD,sGW,sOUT,sDBG,sWS,sWB2,sDBL = range(4,52,4)
sW,sH,sR,sROT,sMT,sNT,sWB,sM,sROLE = range(52,61)
sXO,sW10,sK0,sCA,sCB,sSTR,sWQO,sWQ2 = range(61,69)
sKVO,sKVW,sFO,sFK,sHOS,sHOL,sWDO,sWGO,sWMO,sHC,sQO,sLK = range(69,81)
sT,sT2,sCNT = range(81,84)
sST = 84

DEF = dict(stamps=False, hd=2, spin=1<<20, rot="h2r", seg=[9,17], pf=True, nd=2, nwb=3, keep=2,
           prio={0:3,3:2,6:1,7:0}, force_fb=False, touch=True, outmod="", smem=False, gd=3, gprio=False, poison=True, e_lead=0,
           k_st=[1,2,3,4], k_zs=6, k_u=[16,19,29,33], k_flag=16, k_poll=30, k_chk=40, k_b=56, k_m=[], t_m=0.8, t_ms=1.3,
           t_h=8.9, t_hs=0.9, t_me=1.2, t_p2=7.0, t_d2=8.4, t_pf=13.2, t_po=15, vtouch={"m":50})

def gen(cfg):
    c = dict(DEF); c.update(cfg)
    k = K(); e = k.e
    assert all(a < b for a, b in zip([0]+c["k_st"], c["k_st"])) and all(v < c["k_b"] for v in c["vtouch"].values())
    NWB = c["nwb"]; ND = c["nd"]
    nst = [0]; npt = [0]
    locks = set()
    def lock(x):
        assert x not in locks, x
        locks.add(x)
    def unlock(x): locks.remove(x)
    clk = "s_memrealtime" if c["stamps"] == "rt" else "s_memtime"
    def stamp(grp="main"):
        if grp in ("main","end"):
            if c.get("diag_pad") == npt[0]:
                k.wait_all(lds=True, vm=False)
                k.raw("L_pad:"); e("s_memrealtime s[98:99]"); e("s_waitcnt lgkmcnt(0)"); e("s_sub_u32 s98, s98, s100"); e("s_cmp_lt_u32 s98, 6000"); e("s_cbranch_scc1 L_pad")
            npt[0] += 1
        if not c["stamps"]: return
        if grp not in c.get("stgrp","main").split(",") and grp != "end": return
        i = nst[0]; nst[0] += 1
        assert i < 14
        e(clk + " s[98:99] ; STAMP"); k.wait_all(lds=True, vm=False)
        e(f"s_mov_b32 s{sST+i}, s98")
    m0 = [None]
    def setm0(base, off):
        if m0[0] == (base, off): return
        m0[0] = (base, off)
        if base is None: e(f"s_mov_b32 m0, {off}")
        elif off == 0: e(f"s_mov_b32 m0, s{base}")
        else: e(f"s_add_u32 m0, s{base}, {off}")
    def dma(tag, voff, rs, so, base, off, imm=0, sc1=False):
        setm0(base, off)
        k.vm(tag, f"buffer_load_dwordx4 v{voff}, {sr(rs,4)}, {so} offen" + (f" offset:{imm}" if imm else "") + (" sc1" if sc1 else "") + " lds")
    def srd23(s, n): e(f"s_mov_b32 s{s+2}, {n}"); e(f"s_mov_b32 s{s+3}, 0x20000")

    X0=64; XR=68; T0R=72; GWR=74; VWS=75; U0=78; U1=79
    e(f"s_load_dwordx2 {sr(sX,2)}, s[0:1], 0"); e(f"s_load_dwordx2 {sr(sWA,2)}, s[0:1], 8")
    e(f"s_load_dwordx2 {sr(sWG,2)}, s[0:1], 32"); e(f"s_load_dwordx2 {sr(sWU,2)}, s[0:1], 40"); e(f"s_load_dwordx2 {sr(sGW,2)}, s[0:1], 56")
    if c["stamps"] or "diag_pad" in c:
        e("s_memrealtime s[100:101]"); e(clk + " s[98:99]"); e("s_waitcnt lgkmcnt(0)"); e("s_mov_b32 s101, s98")
    e("s_cmp_ge_u32 s2, 256"); e("s_cbranch_scc1 L_end")
    if c["touch"]:
        e("s_getpc_b64 s[98:99]"); e("s_bfe_u32 s3, s2, 0x20003"); e("s_lshl_b32 s3, s3, 13")
        e("v_and_b32 v1, 0x1f8, v0"); e("v_lshl_add_u32 v1, v1, 4, s3")
        e("v_mov_b32 v3, s99"); e("v_add_co_u32 v2, vcc, s98, v1")
        e(f"v_lshrrev_b32 v{T0}, 6, v0"); e(f"v_and_b32 v0, 63, v0")
        e("v_addc_co_u32 v3, vcc, 0, v3, vcc")
        k.vm("touch", f"global_load_dword v{TT}, v[2:3], off")
    else:
        e(f"v_lshrrev_b32 v{T0}, 6, v0"); e(f"v_and_b32 v0, 63, v0")
    e(f"v_readfirstlane_b32 s{sW}, v{T0}")
    e(f"s_and_b32 s{sT}, s2, 7"); e(f"s_lshr_b32 s{sT2}, s2, 3")
    if True:
        e(f"s_and_b32 s{sR}, s2, 1"); e(f"s_lshr_b32 s{sMT}, s2, 6"); e(f"s_lshl2_add_u32 s{sR}, s{sR}, s{sMT}")
        e(f"s_and_b32 s{sNT}, s{sT2}, 7"); e(f"s_lshr_b32 s{sH}, s{sT}, 1"); e(f"s_lshl3_add_u32 s{sH}, s{sH}, s{sNT}")
    if c["rot"] == "h2r": e(f"s_lshl1_add_u32 s{sROT}, s{sR}, s{sH}"); e(f"s_and_b32 s{sROT}, s{sROT}, 7")
    elif c["rot"] == "none": e(f"s_mov_b32 s{sROT}, 0")
    elif c["rot"] == "p4": e(f"s_and_b32 s3, s{sH}, 3"); e(f"s_lshl_b32 s{sROT}, s3, 1")
    elif c["rot"] == "xr":
        e(f"s_lshr_b32 s{sROT}, s{sT}, 1"); e(f"s_and_b32 s3, s{sT}, 1"); e(f"s_lshl1_add_u32 s{sROT}, s3, s{sROT}")
        e(f"s_lshl2_add_u32 s{sROT}, s{sH}, s{sROT}"); e(f"s_and_b32 s{sROT}, s{sROT}, 7")
    elif c["rot"] == "x1":
        e(f"s_and_b32 s{sROT}, s2, 6"); e(f"s_lshl2_add_u32 s{sROT}, s2, s{sROT}"); e(f"s_and_b32 s{sROT}, s{sROT}, 7")
    elif c["rot"] == "xs":
        e(f"s_lshr_b32 s{sROT}, s{sT}, 1"); e(f"s_and_b32 s3, s{sT}, 1"); e(f"s_lshl1_add_u32 s{sROT}, s3, s{sROT}")
        e(f"s_add_u32 s3, s{sH}, s{sR}"); e(f"s_lshl2_add_u32 s{sROT}, s3, s{sROT}"); e(f"s_and_b32 s{sROT}, s{sROT}, 7")
    elif c["rot"] == "y4":
        e(f"s_bfe_u32 s{sROT}, s2, 0x10001"); e(f"s_add_u32 s3, s{sH}, s{sR}"); e(f"s_lshl1_add_u32 s{sROT}, s3, s{sROT}"); e(f"s_and_b32 s{sROT}, s{sROT}, 7")
    elif c["rot"] == "x4":
        e(f"s_bfe_u32 s{sROT}, s2, 0x10001"); e(f"s_lshl1_add_u32 s{sROT}, s{sH}, s{sROT}"); e(f"s_and_b32 s{sROT}, s{sROT}, 7")
    e(f"s_lshl2_add_u32 s{sMT}, s{sT}, s{sMT}")
    e(f"v_lshrrev_b32 v{U0}, 4, v0"); e(f"v_and_b32 v{U1}, 7, v0"); e(f"v_xor_b32 v{U0}, v{U0}, v{U1}")
    e(f"v_lshlrev_b32 v{U0}, 4, v{U0}"); e(f"v_lshrrev_b32 v{U1}, 3, v0"); e(f"v_lshl_add_u32 v{X0}, v{U1}, 10, v{U0}")
    e(f"v_xor_b32 v{X0+1}, 64, v{X0}"); e(f"v_add_u32 v{X0+1}, {8192-1024}, v{X0+1}")
    e(f"v_add_u32 v{X0+2}, {16384-2048}, v{X0}"); e(f"v_add_u32 v{X0+3}, {16384-2048}, v{X0+1}")
    e(f"s_mul_i32 s{sWB}, s{sW}, {WV}"); e(f"s_add_u32 s{sWB}, s{sWB}, {RA}")
    e(f"s_lshl3_add_u32 s{sM}, s{sR}, s{sW}")
    e(f"s_lshl_b32 s{sXO}, s{sM}, 15")
    srd23(sX, 2048*512*2)
    def x_dma(j):
        def f(i):
            def g_():
                if i == 0:
                    if j: e(f"s_add_u32 s3, s{sROT}, {j}"); e("s_and_b32 s3, s3, 7"); e("s_lshl_b32 s3, s3, 7")
                    else: e(f"s_lshl_b32 s3, s{sROT}, 7")
                    setm0(sWB, (j%3)*4096)
                    e(f"s_add_u32 s{sCNT}, s3, s{sXO}")
                    if j == 0: e("s_waitcnt lgkmcnt(0)")
                dma(("x",j), X0+i, sX, f"s{sCNT}", sWB, (j%3)*4096, imm=i*1024)
            return g_
        return [f(i) for i in range(4)]
    stamp("s1")
    for f_ in x_dma(0): f_()
    e(f"v_lshlrev_b32 v{AK}, 4, v0"); srd23(sGW, 1024)
    e(f"s_lshl_b32 s{sT2}, s{sW}, 7"); setm0(sT2, GW_L)
    e("s_mov_b64 exec, 0xff"); dma(("x",0), AK, sGW, "s3", sT2, GW_L); e("s_mov_b64 exec, -1")
    stamp("s1")
    e(f"s_and_b32 s{sROLE}, s{sH}, 3")
    e(f"s_lshr_b32 s3, s{sH}, 3"); e(f"s_mul_i32 s{sWGO}, s3, 896")
    e(f"s_and_b32 s3, s{sH}, 4"); e(f"s_lshl4_add_u32 s{sCB}, s3, s{sWGO}"); e(f"s_add_u32 s{sCB}, s{sCB}, 512")
    e(f"s_lshr_b32 s3, s{sH}, 2"); e(f"s_lshl3_add_u32 s3, s{sROLE}, s3"); e(f"s_lshl_b32 s{sCA}, s3, 7"); e(f"s_add_u32 s3, s{sCA}, 64")
    e(f"s_cmp_lt_u32 s{sROLE}, 3")
    e(f"s_cselect_b32 s{sCA}, s{sCA}, s{sCB}"); e(f"s_cselect_b32 s{sCB}, s3, s{sCB}")
    e(f"s_cselect_b64 {sr(sWB2,2)}, {sr(sWA,2)}, {sr(sWU,2)}"); e(f"s_cselect_b64 {sr(sWA,2)}, {sr(sWA,2)}, {sr(sWG,2)}")
    e(f"s_cselect_b32 s{sSTR}, 6, 7"); e(f"s_lshl_b32 s{sWA+2}, s{sSTR}, 18"); e(f"s_mov_b32 s{sWB2+2}, s{sWA+2}")
    e(f"s_mov_b32 s{sWA+3}, 0x20000"); e(f"s_mov_b32 s{sWB2+3}, 0x20000")
    e(f"s_lshl_b32 s3, s{sSTR}, 9"); e(f"s_lshl_b32 s{sSTR}, s{sSTR}, 13")
    e(f"v_lshrrev_b32 v{U0}, 2, v0"); e(f"v_mul_u32_u24 v{VWS}, s3, v{U0}"); e(f"v_mul_u32_u24 v{VWG}, 3584, v{U0}")
    e(f"v_and_b32 v{U0}, 3, v0"); e(f"v_lshl_add_u32 v{VWS}, v{U0}, 4, v{VWS}"); e(f"v_lshl_add_u32 v{VWG}, v{U0}, 4, v{VWG}")
    e(f"s_lshl_b32 s{sW10}, s{sW}, 10"); e(f"s_lshl2_add_u32 s{sK0}, s{sROT}, s{sW}")
    def wq_dma(g):
        def a():
            if g == 3: k.require("bar14")
            if g: e(f"s_add_u32 s{sK0}, s{sK0}, 8")
            e(f"s_and_b32 s{sK0}, s{sK0}, 31"); e(f"s_mul_i32 s3, s{sK0}, s{sSTR}")
            setm0(sW10, 16384*(g%3))
            e(f"s_add_u32 s{sWQO}, s3, s{sCA}")
            dma(("wq",g), VWS, sWA, f"s{sWQO}", sW10, 16384*(g%3))
            setm0(sW10, 16384*(g%3)+8192)
            e(f"s_add_u32 s{sWQ2}, s3, s{sCB}")
            dma(("wq",g), VWS, sWB2, f"s{sWQ2}", sW10, 16384*(g%3)+8192)
        return [a]
    for f_ in wq_dma(0): f_()
    stamp("s1")
    for s_, o_ in ((sWS,80),(sDBG,72),(sDBL,72),(sWO,16),(sWD,48),(sOUT,64)):
        e(f"s_load_dwordx2 {sr(s_,2)}, s[0:1], {o_}")
    X1 = x_dma(1)
    srd23(sWG, 512*1792*2); srd23(sWU, 512*1792*2)
    srd23(sWS, WS_SZ); srd23(sDBG, 256); srd23(sWO, 512*512*2); srd23(sWD, 1792*512*2); srd23(sOUT, 2048*512*2)
    e(f"s_mov_b32 s{sDBL+3}, 0x20000")
    e(f"v_mov_b32 v{T0}, 0"); e(f"v_lshlrev_b32 v{T1}, 7, v0")
    e(f"s_lshr_b32 s3, s2, 5"); e(f"s_or_b32 s3, s3, s{sW}"); e("s_cmp_eq_u32 s3, 0")
    e(f"s_cselect_b32 s{sDBL+2}, 256, 0")
    e("s_waitcnt lgkmcnt(0)")
    e("s_cbranch_scc0 L_nolead")
    e("s_lshl_b32 s3, s2, 13")
    e(f"buffer_store_dword v{T0}, v{T1}, {sr(sWS,4)}, s3 offen sc1")
    k.raw("L_nolead:")
    e(f"s_add_u32 s{sT}, s{sROT}, s{sW}"); e(f"s_and_b32 s{sT}, s{sT}, 7"); e(f"s_mul_i32 s{sT}, s{sT}, {64*3584}")
    e(f"s_lshl_b32 s3, s{sNT}, 5"); e(f"s_add_u32 s{sWMO}, s{sWGO}, s3"); e(f"s_add_u32 s{sWGO}, s{sWMO}, s3")
    e(f"s_add_u32 s{sWMO}, s{sWMO}, s{sT}"); e(f"s_add_u32 s{sWMO}, s{sWMO}, 640")
    e(f"s_lshl_b32 s3, s{sH}, 7"); e(f"s_lshl_b32 s{sFO}, s{sM}, 12"); e(f"s_add_u32 s{sFO}, s{sFO}, s3")
    e(f"s_and_b32 s3, s3, 0xe00"); e(f"s_lshl_b32 s{sFK}, s{sW}, 12"); e(f"s_add_u32 s{sFK}, s{sFK}, s3")
    e(f"s_lshr_b32 s3, s{sM}, 1"); e(f"s_mul_i32 s{sHOS}, s3, {HO_T}"); e(f"s_and_b32 s3, s{sW}, 1"); e("s_lshl_b32 s3, s3, 10")
    e(f"s_add_u32 s{sHOS}, s{sHOS}, s3"); e(f"s_add_u32 s{sHOS}, s{sHOS}, {WS_HO}")
    e(f"s_lshr_b32 s3, s{sH}, 3"); e(f"s_mul_i32 s3, s3, {28*2048}"); e(f"s_add_u32 s{sHC}, s3, s{sHOS}")
    e(f"s_lshl_b32 s3, s{sH}, 11"); e(f"s_add_u32 s3, s3, s{sHOS}"); e(f"s_add_u32 s{sHOS}, s3, {112*2048}")
    X1[0]()
    e(f"v_and_b32 v{U0}, 31, v0"); e(f"v_lshlrev_b32 v{PR}, 7, v{U0}"); e(f"v_add_u32 v{PR}, s{sWB}, v{PR}")
    e(f"v_bfe_u32 v{U0}, v0, 1, 3"); e(f"v_lshrrev_b32 v{U1}, 5, v0"); e(f"v_xor_b32 v{U0}, v{U0}, v{U1}")
    for s_ in range(4):
        e(f"v_xor_b32 v{PW}, {2*s_}, v{U0}"); e(f"v_lshl_add_u32 v{XR+s_}, v{PW}, 4, v{PR}")
    e(f"s_lshl_b32 s{sT}, s{sH}, 17"); e(f"s_and_b32 s{sKVO}, s{sT}, 0x380000"); e(f"s_add_u32 s{sT}, s{sT}, {WS_KV}")
    e(f"s_lshl_b32 s3, s{sM}, 11"); e(f"s_add_u32 s{sKVO}, s{sKVO}, s3")
    e(f"s_add_u32 s{sQO}, s{sT}, s3"); e(f"s_add_u32 s{sQO}, s{sQO}, {WS_Q-WS_KV}")
    e(f"s_cmp_eq_u32 s{sROLE}, 0"); e(f"s_cselect_b32 s3, {WS_Q-WS_KV}, 0"); e(f"s_add_u32 s{sKVO}, s{sKVO}, s3"); e(f"s_add_u32 s{sKVO}, s{sKVO}, {WS_KV}")
    e(f"s_lshl_b32 s{sKVW}, s{sW}, 11"); e(f"s_add_u32 s{sKVW}, s{sKVW}, s{sT}")
    e(f"s_mul_i32 s{sLK}, s{sW}, {KVT}")
    X1[1]()
    e(f"v_bfe_u32 v{U0}, v0, 2, 2"); e(f"v_lshl_add_u32 v{U0}, v{U1}, 3, v{U0}")
    e(f"v_and_b32 v{PR}, 3, v0"); e(f"v_lshlrev_b32 v{PR}, 3, v{PR}")
    e(f"v_lshl_add_u32 v{VD0}, v{U0}, 5, v{PR}")
    e(f"v_lshl_add_u32 v{T0R}, v{U0}, 6, v{PR}"); e(f"v_and_b32 v{PW}, 16, v0"); e(f"v_lshl_add_u32 v{T0R}, v{PW}, 1, v{T0R}")
    e(f"s_lshl_b32 s3, s{sW}, 7"); e(f"s_add_u32 s3, s3, {GW_L}"); e(f"v_lshl_add_u32 v{GWR}, v{U1}, 4, s3")
    e(f"v_add_u32 v{AWA}, {RA}, v{T0R}"); e(f"v_add_u32 v{AWB}, {RA+4*WV}, v{T0R}")
    e(f"v_lshl_add_u32 v{VD0}, v{PW}, 7, v{VD0}"); e(f"v_add_u32 v{VD0}, {RA}, v{VD0}"); e(f"v_add_u32 v{VD1}, {4*WV}, v{VD0}")
    e(f"s_lshr_b32 s3, s{sW}, 1"); e("s_mul_i32 s3, s3, 28"); e(f"s_and_b32 s{sT}, s{sW}, 1"); e(f"s_add_u32 s3, s3, s{sT}"); e("s_add_u32 s3, s3, 16")
    e(f"s_lshl_b32 s{sWDO}, s3, 14"); e(f"s_lshl_b32 s{sT}, s{sNT}, 7"); e(f"s_add_u32 s{sWDO}, s{sWDO}, s{sT}")
    e(f"s_mul_i32 s{sHOL}, s{sMT}, {HO_T}"); e(f"s_mul_i32 s3, s{sW}, {14*2048}"); e(f"s_add_u32 s{sHOL}, s{sHOL}, s3"); e(f"s_add_u32 s{sHOL}, s{sHOL}, {WS_HO}")
    e("s_and_b32 s0, s2, 0xf8"); e(f"s_add_u32 s0, s0, s{sW}"); e("s_and_b32 s3, s2, 1"); e("s_lshl_b32 s3, s3, 8"); e("s_add_u32 s0, s0, s3")
    e(f"s_lshr_b32 s3, s{sH}, 3"); e("s_lshl2_add_u32 s0, s0, s3"); e(f"s_mul_i32 s{sM}, s0, 896")
    X1[2]()
    e(f"v_and_b32 v{PR}, 15, v0"); e(f"v_lshl_add_u32 v{PR}, v{U1}, 5, v{PR}"); e(f"v_lshlrev_b32 v{PR}, 4, v{PR}")
    e(f"v_add_u32 v{AV0}, 1024, v{PR}"); e(f"v_add_u32 v{AV1}, 1280, v{PR}")
    e("s_mov_b32 exec_lo, 0xfffe0000"); e("s_mov_b32 exec_hi, 0xfffe0000")
    e(f"v_mov_b32 v{AV0}, 0x40000"); e(f"v_mov_b32 v{AV1}, 0x40000")
    e("s_mov_b32 exec_lo, 0x10000"); e("s_mov_b32 exec_hi, 0x10000")
    e(f"v_mov_b32 v{AV0}, 2048"); e(f"v_mov_b32 v{AV1}, 2048")
    e("s_mov_b64 exec, -1")
    e(f"s_lshl2_add_u32 s3, s{sW}, {PROG}"); e(f"v_mov_b32 v{PW}, s3")
    e(f"v_and_b32 v{U0}, 7, v0"); e(f"v_lshlrev_b32 v{PR}, 2, v{U0}"); e(f"v_add_u32 v{PR}, {PROG}, v{PR}")
    e(f"v_lshlrev_b32 v{VFL}, 7, v{U0}")
    e(f"v_lshrrev_b32 v{U0}, 1, v0"); e(f"v_mul_u32_u24 v{VWM}, 3584, v{U0}"); e(f"v_and_b32 v{U0}, 1, v0"); e(f"v_lshl_add_u32 v{VWM}, v{U0}, 4, v{VWM}")
    e(f"v_lshlrev_b32 v{U0}, 3, v0"); e(f"v_mov_b32 v{WB}, 0"); e(f"v_mov_b32 v{WB+1}, 0")
    k.lds("z", f"ds_write_b64 v{U0}, {vr(WB,2)} offset:{PROG}")
    X1[3]()
    stamp(); stamp("s1")

    WSLOT = dict(G=2,U=0,M=1)
    def w_dma(name, x):
        lb = WSLOT[name]*4096 + (1024*(x&2) if name == "M" else 0)
        def pre(): setm0(sWB, lb)
        def f():
            k.provide(f"Wi{name}{x}")
            if name == "M":
                pre()
                if x & 1: e(f"s_add_u32 s{sT}, s{sWMO}, {32*3584 - 1024}")
                dma(("W",name), VWM, sWG if x < 2 else sWU, f"s{sT if x&1 else sWMO}", sWB, lb, imm=1024*(x&1))
            else:
                e(f"s_add_u32 s{sK0}, s{sK0}, 8"); e(f"s_and_b32 s{sK0}, s{sK0}, 31"); e(f"s_mul_i32 s3, s{sK0}, {16*3584}")
                setm0(sWB, lb+1024*x)
                e(f"s_add_u32 s{sT}, s3, s{sWGO}")
                dma(("W",name,x), VWG, sWG if name == "G" else sWU, f"s{sT}", sWB, lb+1024*x)
        f.pre = pre
        return f
    def touch(rs, n, mask=None, T0=T0):
        def f():
            lock("T0"); unlock("T0")
            e(f"v_lshlrev_b32 v{T0}, 3, v{AK}")
            e(f"s_lshl3_add_u32 s3, s2, s{sW}"); e(f"s_mul_i32 s3, s3, {n*128}")
            setm0(None, LDS_BYTES-256)
            for r_, m_ in zip(rs, mask or [(1<<n)-1]):
                e(f"s_mov_b64 exec, {m_}")
                k.vm("pf", f"buffer_load_dword v{T0}, {sr(r_,4)}, s3 offen lds")
            e("s_mov_b64 exec, -1")
        return f
    A0 = SA; A1 = GB; ZP = 126; OM = 126; Z = VF+4
    FS = lambda s_: SB + 8*(s_%2)
    GD = c["gd"]
    def st_reads(s_, part):
        if s_ > 31: return
        g = s_//8; b = FS(s_); o = 16384*(g%3) + 8192*part + 1024*(s_%8)
        k.lds(("f",part,s_), f"ds_read_b64_tr_b16 {vr(b+4*part,2)}, v{T0R} offset:{o}")
        k.lds(("f",part,s_), f"ds_read_b64_tr_b16 {vr(b+4*part+2,2)}, v{T0R} offset:{o+256}")
    dbg_txt = [f"v_lshrrev_b32 v{T1}, 1, v{AK}", f"buffer_load_dword v{T1}, v{T1}, {sr(sDBG,4)}, 0 offen sc1"]
    def masked(mask, tx):
        on = ["s_mov_b32 exec_hi, 0"] if mask == 0xffffffff else [f"s_mov_b64 exec, {hex(mask)}"]
        return tx[:-1] + on + [tx[-1], "s_mov_b64 exec, -1"]
    def poll_issue(tag, mask, tx):
        for t in masked(mask, tx):
            if t.startswith("buffer_"): k.vm(tag, t)
            else: e(t)
    def dbg_ld(): poll_issue("dbgld", 0xffffffff, dbg_txt)
    def dbg_st():
        k.wait(vm=[("x",1)])
        e(f"v_mov_b32 v{T0}, 1"); e("s_lshl_b32 s3, s2, 3")
        k.vm("dbgst", f"buffer_store_dword v{T0}, off, {sr(sDBL,4)}, s3 sc1")
    def spin_global(name, mask, load):
        back = k.label(name+"_b"); slow = k.label(name+"_s")
        test = [f"v_cmp_eq_u32 vcc, 0, v{T1}", f"s_and_b32 s3, vcc_lo, {hex(mask)}"]
        for t in test: e(t)
        e(f"s_cbranch_scc1 {slow}")
        k.raw(back+":")
        k.ool.append("\n".join([slow+":", f"    s_mov_b32 s{sCNT}, {c['spin']}", slow+"_l:"] + ["    "+t for t in masked(mask, load)] + ["    s_waitcnt vmcnt(0)"]
            + ["    "+test[0], "    s_nop 1", "    "+test[1]]
            + [f"    s_cbranch_scc0 {back}", f"    s_sub_u32 s{sCNT}, s{sCNT}, 1", f"    s_cmp_lg_u32 s{sCNT}, 0", f"    s_cbranch_scc1 {slow}_l"]
            + [f"    s_branch {back}"]))
    def flag_store(stage):
        if stage > 1: k.require(f"flag{stage-1}")
        k.provide(f"flag{stage}")
        e("s_mov_b64 exec, 2")
        k.vm(("flag",stage), f"buffer_store_dword v{AK}, off, {sr(sWS,4)}, s{sFO} sc1")
        e("s_mov_b64 exec, -1")
        if stage < 4: e(f"s_add_u32 s{sFO}, s{sFO}, 0x40000")
    def x_read(j, s_):
        if s_ == 0: k.wait(vm=[("x",j)])
        k.lds(("xr",4*j+s_), f"ds_read_b128 {ar(16*j+4*s_,4)}, v{XR+s_} offset:{(j%3)*4096}")
    names = ["G","U","M"]
    def wread(i):
        if i >= 96: return
        nm = names[i//32]; s_ = i % 32
        b = WB+4*(i%3)
        if nm == "M":
            k.require("all:fill_M")
            o = ((s_>>2)&3)*WV + WSLOT[nm]*4096 + (s_&3)*512; a = VD0 if s_ < 16 else VD1; d_ = 128
        else:
            k.require(f"all:fill_{nm}{s_>>4}")
            o = (s_&3)*WV + WSLOT[nm]*4096 + (s_>>3)*1024; a = AWB if s_ & 4 else AWA; d_ = 256
        k.lds(("w",i), f"ds_read_b64_tr_b16 {vr(b,2)}, v{a} offset:{o}")
        k.lds(("w",i), f"ds_read_b64_tr_b16 {vr(b+2,2)}, v{a} offset:{o+d_}")
        k.provide(f"wrd{i}")
        if s_ == 31: k.provide("done_"+nm)
    def w_bar(nm, hf):
        k.require(f"Wi{nm}{2*hf}", f"Wi{nm}{2*hf+1}"); stamp("win")
        k.wait(vm=[("W",nm,2*hf+1)]); e("s_barrier"); k.provide(f"all:fill_{nm}{hf}"); stamp("win")
    def half_sum(e_, z):
        e_(f"v_mov_b32 v{z+1}, v{z}"); e_(f"v_permlane32_swap_b32 v{z}, v{z+1}"); e_(f"v_add_f32 v{z}, v{z}, v{z+1}")
    def sig_seq(regs, scaled=True):
        out = []
        for p in range(0, len(regs), 4):
            q_ = regs[p:p+4]
            out += [f"v_mul_f32 v{a}, {hex(f2u(-LOG2E))}, v{a}" for a in q_] + [f"v_exp_f32 v{a}, v{a}" for a in q_]
            out += [(f"v_fma_f32 v{a}, v{a}, v{VC}, v{VC}" if scaled else f"v_add_f32 v{a}, 1.0, v{a}") for a in q_] + [f"v_rcp_f32 v{a}, v{a}" for a in q_]
        return out
    assert c["rot"] == "h2r"
    for s_ in range(4): x_read(0,s_)
    for s_ in range(4): k.lds("gw", f"ds_read_b128 {vr(GA+4*s_,4)}, v{GWR} offset:{32*s_}")
    k.wait(vm=[("wq",0)], lds=["z"])
    e("s_barrier")
    stamp("s1")
    st_reads(0,0); st_reads(0,1)
    k.wait(lds=["gw"])
    st_reads(1,0); st_reads(1,1)
    for s_ in range(4):
        for i in range(4): e(f"v_dot2_f32_bf16 v{WB+i}, {ar(4*s_+i)}, v{GA+4*s_+i}, {'0' if s_==0 else vr(WB+i)}")
    def save(): return (list(k.lq), list(k.vq), set(k.have), m0[0], set(locks), nst[0], npt[0])
    def restore(st_):
        k.lq, k.vq, k.have = list(st_[0]), list(st_[1]), set(st_[2]); m0[0] = st_[3]; locks.clear(); locks.update(st_[4]); nst[0] = st_[5]; npt[0] = st_[6]
    var_text = []
    def variant(label, st_, ctx, fn):
        cur = save(); main = k.ins
        restore(st_); k.ins = list(ctx); n0 = len(k.ins)
        fn(); e("s_branch L_join")
        end = save()
        assert [t for t,_ in end[0]] == [t for t,_ in cur[0]] and [t for t,_ in end[1]] == [t for t,_ in cur[1]] and end[3] == cur[3], (label, end[1], cur[1])
        var_text.append(label + ":\n" + "\n".join((i.text if i.label else "    "+i.text.replace("; STAMP","")) for i in k.ins[n0:]))
        k.ins = main; restore(cur)
    def startup(swapped):
        DQ = {0: wq_dma(1) + x_dma(2), 1: [dbg_st] + x_dma(3), 2: wq_dma(2) + x_dma(4), 3: x_dma(5), 4: wq_dma(3) + x_dma(6), 5: x_dma(7),
              6: [w_dma("G",x) for x in range(4)], 7: [dbg_ld] + [w_dma("U",x) for x in range(4) if c["k_u"][x] < 0]}
        SM = dict(zip([2,4,6,8, 10,12,14,16, 17,19,20,22], [(sWG,x) for x in range(4)] + [(sWU,x) for x in range(4)] + [(sWG,5),(sWG,6),(sWU,5),(sWU,6)]))
        def mm(acc, wf, xa, cin):
            a_, b_ = (ar(xa,4), vr(wf,4)) if swapped else (vr(wf,4), ar(xa,4))
            e(f"v_mfma_f32_32x32x16_bf16 {vr(acc,16)}, {a_}, {b_}, {cin or vr(acc,16)}")
        for j in range(8):
            dq = DQ[j]
            stamp("qkv")
            for s_ in range(4*j, 4*j+4):
                n_ = -(-len(dq)//(4*j+4-s_))
                b = FS(s_); xa = 4*s_
                z0 = "0" if s_ == 0 else None
                k.wait(lds=[("f",0,s_),("xr",s_)])
                mm(A0, b, xa, z0)
                if s_ % 8 == 6 and s_ < 30:
                    k.wait(vm=[("wq",(s_+2)//8)])
                    e("s_barrier"); k.provide(f"bar{s_}")
                if s_ == 30: w_bar("G", 0)
                if 4 <= s_+2 < 32: x_read((s_+2)//4, (s_+2)%4)
                st_reads(s_+2, 0)
                if s_ == 31 and GD >= 2: wread(GD-2)
                if n_ >= 2: dq.pop(0)()
                if s_ == 1:
                    e(f"v_add_f32 v{WB}, v{WB}, v{WB+1}"); e(f"v_add_f32 v{WB+2}, v{WB+2}, v{WB+3}"); e(f"v_add_f32 v{ZP}, v{WB}, v{WB+2}"); half_sum(e, ZP)
                k.wait(lds=[("f",1,s_)])
                mm(A1, b+4, xa, z0)
                st_reads(s_+2, 1)
                if s_ == 30 and GD >= 3: wread(0)
                if s_ == 31: wread(GD-1)
                if n_ >= 1: dq.pop(0)()
                if c["smem"] and s_ in SM: e(f"s_load_dwordx2 s[0:1], {sr(SM[s_][0],2)}, s{sM} offset:{128*SM[s_][1]+60}")
            assert not dq
        stamp(); stamp("qkv"); stamp("s1")
    KVM = [0xff, 0x6, 0x66666666]
    def kv_poll_txt(ch):
        if ch == 2: return [f"buffer_load_dword v{T1}, v{VFL}, {sr(sWS,4)}, s{sFK} offen sc1"]
        if ch == 0: return [f"s_and_b32 s{sT2}, s{sFO}, 0x3fc00", f"buffer_load_dword v{T1}, v{VFL}, {sr(sWS,4)}, s{sT2} offen sc1"]
        return [f"s_add_u32 s{sT2}, s{sR}, {ch}", f"s_and_b32 s{sT2}, s{sT2}, 7", f"s_lshl_b32 s{sT2}, s{sT2}, 15", f"s_add_u32 s{sT2}, s{sT2}, s{sFK}",
                f"buffer_load_dword v{T1}, v{VFL}, {sr(sWS,4)}, s{sT2} offen sc1"]
    def kv_poll(ch):
        lock("T1"); k.require("init")
        if ch == 2: e(f"v_and_b32 v{VFL}, 0x180, v{VFL}"); e(f"v_bfe_u32 v{T1}, v{AK}, 6, 3"); e(f"v_lshl_add_u32 v{VFL}, v{T1}, 15, v{VFL}")
        poll_issue(("kp",ch), KVM[ch], kv_poll_txt(ch))
    def kv_pick(ch):
        unlock("T1")
        k.wait(vm=[("kp",ch)])
        spin_global("kv", KVM[ch], kv_poll_txt(ch))
        k.provide(f"kvflag{ch}")
    def kv_dma(ch, q):
        def f():
            k.require(f"kvflag{min(ch,2)}", "all:fill_G1")
            if ch >= 3: k.require(f"all:done_KV{ch-3}")
            k.provide(f"kvi{ch}_{q}")
            if q == 0:
                setm0(sLK, (ch%3)*KVS)
                e(f"s_add_u32 s{sT2}, s{sR}, {ch}"); e(f"s_and_b32 s{sT2}, s{sT2}, 7"); e(f"s_lshl_b32 s{sT2}, s{sT2}, 14"); e(f"s_add_u32 s{sKVO}, s{sT2}, s{sKVW}")
            dma(("kvd",ch), AK, sWS, f"s{sKVO}", sLK, (ch%3)*KVS, imm=1024*q, sc1=True)
        if q: f.pre = lambda: setm0(sLK, (ch%3)*KVS)
        return f
    kvo = lambda t: ((t>>3)%3)*KVS + (t&7)*KVT
    def rK(t):
        if t > 63: return
        k.require(f"all:fill_KV{t>>3}"); k.provide(f"krd{t}")
        k.lds(("k",t), f"ds_read_b128 {vr(KF,4)}, v{AK} offset:{kvo(t)}")
    def rV(t, f):
        if t > 63: return
        k.require(f"all:fill_KV{t>>3}")
        k.lds(("v",f,t), f"ds_read_b128 {vr(VF+4*f,4)}, v{AV1 if f else AV0} offset:{kvo(t)}")
        if f == 1 and t % 8 == 7: k.provide(f"done_KV{t>>3}")
    Sb = lambda t: SB if t % 2 == 0 else SA
    def QK(t):
        k.require(f"krd{t}"); k.wait(lds=[("k",t)])
        e(f"v_mfma_f32_32x32x16_bf16 {vr(Sb(t),16)}, {vr(KF,4)}, {vr(Q,4)}, 0")
    def PV(t, f):
        k.wait(lds=[("v",f,t)])
        e(f"v_smfmac_f32_32x32x32_bf16 {vr(O,16)}, {vr(VF+4*f,4)}, {vr(Sb(t)+8*f,8)}, v{IDX}")
    ON = SB; PA = SB+4; ZR = SB+8
    def common_ops():
        GQ = {}
        def gq(s_, f): GQ.setdefault(s_, []).append(f)
        def init_chk():
            k.wait(vm=["dbgld"]); spin_global("init", 0xffffffff, dbg_txt); k.provide("init")
        gq(16-GD, init_chk)
        def pads():
            k.require("all:fill_G1")
            e(f"v_mov_b32 v{PA}, s{sLK}")
            for i in range(4): e(f"v_mov_b32 v{ON+i}, 0x3f803f80")
            e("s_mov_b64 exec, 1")
            for x in range(3): k.lds("pad", f"ds_write_b128 v{PA}, {vr(ON,4)} offset:{x*KVS+2048}")
            e("s_mov_b64 exec, -1")
        gq(24, pads)
        def clr():
            for i in range(4): e(f"v_mov_b32 v{ZR+i}, 0")
            e(f"v_lshrrev_b32 v{T0}, 7, v{AK}"); e(f"v_and_b32 v{ZR+4}, 0x70, v{AK}"); e(f"v_lshl_add_u32 v{T0}, v{T0}, 18, v{ZR+4}")
            e("s_mov_b32 exec_lo, 0xffffff00"); e("s_mov_b32 exec_hi, 0")
            k.vm("st", f"buffer_store_dwordx4 {vr(ZR,4)}, v{T0}, {sr(sWS,4)}, s{sFO} offen sc1")
            e("s_mov_b64 exec, -1")
        def zst():
            e(f"v_lshrrev_b32 v{T0}, 2, v{AK}"); e(f"s_add_u32 s{sWQ2}, s{sFO}, {WS_Z}")
            e("s_mov_b32 exec_hi, 0")
            k.vm("st", f"buffer_store_dword v{ZP}, v{T0}, {sr(sWS,4)}, s{sWQ2} offen sc1")
            e("s_mov_b32 exec_hi, -1")
            e(f"s_and_b32 s{sWQ2}, s{sWQ2}, 0xfffffc00"); k.provide("zst")
        gq(c["k_zs"]-1, clr); gq(c["k_zs"], zst)
        for x in range(4):
            if c["k_u"][x] >= 0: gq(c["k_u"][x], w_dma("U",x))
        def pub1(): k.require("zst", "init", "st3"); stamp("win"); k.wait(vm=["st"]); flag_store(1)
        gq(c["k_flag"], pub1)
        gq(c["k_poll"], lambda: kv_poll(0))
        kc = c["k_chk"]
        def first_kv(): stamp("win"); kv_pick(0); stamp("win"); kv_dma(0,0)()
        gq(kc, first_kv)
        gq(kc+1, lambda: k.vm("q", f"buffer_load_dwordx4 {vr(Q,4)}, v{AK}, {sr(sWS,4)}, s{sQO} offen sc1"))
        gq(kc+2, kv_dma(0,1))
        for x in range(4): gq(kc+3+x//2, lambda x=x: k.vm("zp", f"buffer_load_dword v{Z+x}, v{T0}, {sr(sWS,4)}, s{sWQ2} offen offset:{256*x} sc1"))
        gq(kc+5, lambda: kv_poll(1))
        for x, s_ in enumerate(c["k_m"]): gq(s_, w_dma("M",x))
        def bar_b():
            k.require("kvi0_1"); stamp("win"); k.wait(vm=["q", ("kvd",0), "zp"], lds=["pad"]); e("s_barrier"); stamp("win")
            k.provide("all:fill_KV0", "all:done_G", "zready"); rK(0); rV(0,0)
        gq(c["k_b"], bar_b)
        if "m" in c["vtouch"]: gq(c["vtouch"]["m"], touch([sWU,sWG], 7, [0x60,0x60], VC))
        if "u" in c["vtouch"]: gq(c["vtouch"]["u"], touch([sWU], 7, [0x0f], VC))
        if "um" in c["vtouch"]: gq(c["vtouch"]["um"], touch([sWU,sWG], 7, [0x6f,0x60], VC))
        def qk0(): QK(0); rK(1)
        gq(62, qk0)
        return GQ
    def role_ops(role):
        RQ = {}
        ks = c["k_st"]
        if role == 3:
            seq = sig_seq(list(range(A0,A0+16)), scaled=False) + [f"v_pk_mul_f32 {vr(A0+2*i,2)}, {vr(A0+2*i,2)}, {vr(A1+2*i,2)}" for i in range(8)]
            for n, t_ in enumerate(seq): RQ.setdefault(1 + n*(KE-2)//len(seq), []).append(t_)
            RQ.setdefault(ks[3], []).append(lambda: k.provide("st3"))
            return RQ
        if role == 0: RQ.setdefault(0, []).extend([f"s_mov_b32 s98, {hex(f2u(0.25*LOG2E))}", "s_mov_b32 s99, s98", f"v_mov_b32 v{U0}, s98"])
        if role == 2: RQ.setdefault(0, []).extend([f"v_and_b32 v{U0}, 0x2f0, v{AK}", f"v_bfe_u32 v{U1}, v{AK}, 8, 1", f"v_lshl_add_u32 v{U0}, v{U1}, 17, v{U0}"])
        for p in range(4):
            a_ = (A0 if p < 2 else A1) + 8*(p&1)
            seq = []
            if role == 0: seq += [f"v_pk_mul_f32 {vr(a_+2*i,2)}, {vr(a_+2*i,2)}, {vr(U0,2)} op_sel_hi:[1,0]" for i in range(4)]
            seq += [f"v_cvt_pk_bf16_f32 v{a_+i}, v{a_+2*i}, v{a_+2*i+1}" for i in range(4)]
            if role == 2: seq += [f"v_permlane32_swap_b32 v{a_}, v{a_+2}", f"v_permlane32_swap_b32 v{a_+1}, v{a_+3}"]
            k0 = max(0, ks[p]-3) if p == 0 else max(ks[p-1], ks[p]-4)
            for n, t_ in enumerate(seq): RQ.setdefault(k0 + n*(ks[p]-k0)//len(seq), []).append(t_)
            def st(p=p, a_=a_):
                if role == 2:
                    k.vm("st", f"buffer_store_dwordx4 {vr(a_,4)}, v{U0}, {sr(sWS,4)}, s{sKVO} offen offset:{1024+256*(p&1)} sc1")
                    if p == 1: e(f"s_add_u32 s{sKVO}, s{sKVO}, {2*131072}")
                else:
                    k.vm("st", f"buffer_store_dwordx4 {vr(a_,4)}, v{AK}, {sr(sWS,4)}, s{sKVO} offen sc1")
                    if p < 3: e(f"s_add_u32 s{sKVO}, s{sKVO}, 131072")
                k.provide(f"st{p}")
            RQ.setdefault(("m", ks[p]), []).append(st)
        return RQ
    KE = 33-GD
    def gu_steps(s0, s1, RQ):
        GQ = common_ops()
        for s_ in range(s0, s1):
            acc = GA if s_ < 32 else GB
            if s_ in c.get("gst",[]): stamp("gst")
            if c.get("gprio") and s_ % 4 == 0: e(f"s_setprio {3-(s_%16)//4}")
            k.wait(lds=[("w",s_)])
            e(f"v_mfma_f32_32x32x16_bf16 {vr(acc,16)}, {vr(WB+4*(s_%3),4)}, {ar(4*(s_%32),4)}, {'0' if s_%32==0 else vr(acc,16)}")
            if (s_+GD) % 16 == 0 and s_+GD < 64: w_bar(names[(s_+GD)//32], ((s_+GD)//16)&1)
            if s_+GD < 64: wread(s_+GD)
            for f_ in RQ.get(("m",s_), []): f_()
            for f_ in GQ.get(s_, []): f_()
            for t_ in RQ.get(s_, []):
                if callable(t_): t_()
                else: e(t_)
            if s_ == 31: stamp()
        if s1 == KE: k.wait(vm=["st"])
    e(f"s_cmp_eq_u32 s{sROLE}, 2"); e("s_cbranch_scc1 L_r2")
    st0 = save(); ctx0 = k.ins[-16:]
    startup(False)
    e(f"s_cmp_eq_u32 s{sROLE}, 0"); e("s_cbranch_scc1 L_r0")
    st1 = save(); ctx1 = k.ins[-16:]
    e(f"s_cmp_eq_u32 s{sROLE}, 3"); e("s_cbranch_scc1 L_r3")
    gu_steps(0, KE, role_ops(1))
    variant("L_r0", st1, ctx1, lambda: gu_steps(0, KE, role_ops(0)))
    variant("L_r3", st1, ctx1, lambda: gu_steps(0, KE, role_ops(3)))
    def v_path(): startup(True); gu_steps(0, KE, role_ops(2))
    variant("L_r2", st0, ctx0, v_path)
    k.raw("L_join:")
    RQ = {}
    kz = c["k_b"]
    seq = [f"v_mov_b32 v{O+i}, 0" for i in range(16)] + [f"v_mov_b32 v{IDX}, 0xdddddddd"]
    for n, t_ in enumerate(seq): RQ.setdefault(KE + n*(34-KE)//len(seq), []).append(t_)
    seq = sig_seq(list(range(GA,GA+16)), scaled=False)
    for n, t_ in enumerate(seq): RQ.setdefault(34 + n*(kz-34)//len(seq), []).append(t_)
    seq = [lambda: k.require("zready"), f"v_add_f32 v{Z}, v{Z}, v{Z+1}", f"v_add_f32 v{Z+2}, v{Z+2}, v{Z+3}", f"v_add_f32 v{Z}, v{Z}, v{Z+2}"]
    half_sum(seq.append, Z)
    seq += [f"v_mul_f32 v{Z}, {hex(f2u(LOG2E))}, v{Z}", f"v_exp_f32 v{VC}, v{Z}", f"v_exp_f32 v{VG}, -v{Z}", f"v_add_f32 v{VC}, 1.0, v{VC}", f"v_add_f32 v{VG}, 1.0, v{VG}",
            f"v_rcp_f32 v{OM}, v{VC}", f"v_rcp_f32 v{VG}, v{VG}", f"v_min_f32 v{VC}, {hex(f2u(2.0**100))}, v{VC}"]
    seq += [f"v_pk_mul_f32 {vr(GA+2*i,2)}, {vr(GA+2*i,2)}, {vr(OM,2)} op_sel_hi:[1,0]" for i in range(8)]
    for n, t_ in enumerate(seq): RQ.setdefault(kz + n*(64-kz)//len(seq), []).append(t_)
    gu_steps(KE, 64, RQ)
    e(f"s_cmp_eq_u32 s{sROLE}, 3"); e("s_cbranch_scc1 L_fepi2")
    k.raw("L_join2:")
    kv_ = K(); kv_.verify = False; ev = kv_.e
    kv_.raw("L_fepi2:")
    ev(f"s_and_b32 s3, s{sH}, 4"); ev("s_lshl_b32 s3, s3, 9"); ev(f"s_add_u32 s3, s3, s{sHC}"); ev(f"s_add_u32 s{sT}, s3, {14*2048}")
    for i in range(8): ev(f"v_pk_mul_f32 {vr(A0+2*i,2)}, {vr(A0+2*i,2)}, {vr(OM,2)} op_sel_hi:[1,0]")
    for i in range(8): ev(f"v_cvt_pk_bf16_f32 v{A0+i}, v{A0+2*i}, v{A0+2*i+1}")
    ev(f"buffer_store_dwordx4 {vr(A0,4)}, v{AK}, {sr(sWS,4)}, s3 offen sc1")
    ev(f"buffer_store_dwordx4 {vr(A0+4,4)}, v{AK}, {sr(sWS,4)}, s{sT} offen sc1")
    ev("s_branch L_join2")
    e(f"s_add_u32 s3, s{sNT}, 2"); e("s_lshl_b32 s3, s3, 11"); e(f"s_add_u32 s{sXO}, s3, s{sHC}"); e(f"s_add_u32 s{sWQ2}, s{sXO}, {14*2048}")
    stamp()

    side = []
    vside = []
    now = [0.0]
    def at(t, fn): side.append([t, fn]); side.sort(key=lambda x: x[0])
    seq = [f"v_pk_mul_f32 {vr(GB+2*i,2)}, {vr(GA+2*i,2)}, {vr(GB+2*i,2)}" for i in range(8)] + [f"v_cvt_pk_bf16_f32 v{GB+i}, v{GB+2*i}, v{GB+2*i+1}" for i in range(8)]
    for n, t_ in enumerate(seq):
        def f(t_=t_, last=(n == 15)):
            e(t_)
            if last: k.provide("prod")
        vside.append((0.5 + n/16, f))
    def second_kv(): kv_pick(1); kv_dma(1,0)()
    at(0.0, second_kv); at(0.2, kv_dma(1,1))
    def gu_op(i):
        def f():
            nm = names[i//32]; s_ = i % 32
            acc = GA; k.require("prod")
            k.require(f"wrd{i}"); k.wait(lds=[("w",i)])
            e(f"v_mfma_f32_32x32x16_bf16 {vr(acc,16)}, {vr(WB+4*(i%NWB),4)}, {ar(4*s_,4)}, {'0' if s_==0 else vr(acc,16)}")
            if nm == "M": k.provide(f"xdead{s_}")
            wread(i+NWB)
            if s_ == 31: mixed(now[0]+0.7)
        return f
    def mixed(t0):
        seq = sig_seq(list(range(GA,GA+8)))
        seq += [f"v_pk_mul_f32 {vr(GA+2*i,2)}, {vr(GA+2*i,2)}, {vr(GA+8+2*i,2)}" for i in range(4)]
        seq += [f"v_cvt_pk_bf16_f32 v{GA+i}, v{GA+2*i}, v{GA+2*i+1}" for i in range(4)]
        for n, txt in enumerate(seq):
            def f(txt=txt, last=(n == len(seq)-1)):
                e(txt)
                if last:
                    def st():
                        e(f"s_and_b32 s3, s{sNT}, 1"); e("s_mul_i32 s3, s3, 14"); e(f"s_lshr_b32 s{sT}, s{sNT}, 1"); e(f"s_add_u32 s3, s3, s{sT}"); e("s_add_u32 s3, s3, 10")
                        e("s_lshl_b32 s3, s3, 11"); e(f"s_add_u32 s{sXO}, s3, s{sHC}")
                        k.vm(("h",1), f"buffer_store_dwordx4 {vr(GA,4)}, v{AK}, {sr(sWS,4)}, s{sXO} offen sc1")
                        k.provide("hst1")
                    def fl():
                        k.require("hst1"); k.wait(vm=[("h",1)]); flag_store(3)
                    at(now[0], st); at(now[0]+3.0, fl)
            vside.append((t0 + c.get("mspan",3.0)*n/len(seq), f))
    pos = {i: i % 4 for i in range(14)}
    nxt = [4, 5] + [(14-ND-2+x) % 4 for x in range(2)] if ND else None
    if ND:
        assert ND == 2
        pos[14], pos[15], pos[16], pos[17] = 4, 5, (10 % 4), (11 % 4)
        prev = {14: None, 15: None, 16: 10, 17: 11}
    else:
        for i in range(14,18): pos[i] = i % 4
        prev = {i: i-4 for i in range(14,18)}
    for i in range(14): prev[i] = i-4 if i >= 4 else None
    pbyte = lambda i: ((pos[i]+4) % 6)*2048
    def wd_dma(i, q):
        def pre(): setm0(sWB, pbyte(i))
        def f():
            k.require(["all:done_G","all:done_U","all:done_M"][pos[i]//2], "vwg")
            if prev[i] is not None: k.require(f"dw_used{prev[i]}")
            if q == 0 and i > 0: k.require(f"wdi{i-1}_1")
            k.provide(f"wdi{i}_{q}")
            dma(("wd",i), VWG2 if q else VWG, sWD if i < 14 else sWO, f"s{sWDO}", sWB, pbyte(i), imm=1024*q)
            if q == 1:
                if i == 13:
                    e(f"s_lshl_b32 s{sWDO}, s{sW}, 16"); e(f"s_lshl_b32 s3, s{sNT}, 7"); e(f"s_add_u32 s{sWDO}, s{sWDO}, s3")
                elif i == 1: e(f"s_sub_u32 s{sWDO}, s{sWDO}, {18*16384}")
                elif i == 9: e(f"s_add_u32 s{sWDO}, s{sWDO}, {6*16384}")
                elif i < 17: e(f"s_add_u32 s{sWDO}, s{sWDO}, {32768 if i < 14 else 16384}")
        f.pre = pre
        return f
    def h_load(i, mi):
        def f():
            k.require("hflag2" if i < 10 else "hflag3", f"xdead{2*(i%4)+mi}")
            if i >= 4: k.require(f"dstep{i-4}")
            if mi == 0 and i > 0: k.require(f"hli{i-1}_1")
            k.provide(f"hli{i}_{mi}")
            k.vm(("hl",i), f"buffer_load_dwordx4 {ar(8*(i%4)+4*mi,4)}, v{AK}, {sr(sWS,4)}, s{sHOL} offen offset:{(i&1)*2048+mi*1024} sc1")
            if mi == 1 and (i & 1): e(f"s_add_u32 s{sHOL}, s{sHOL}, 4096")
        return f
    def d_read(i, j, dst=None):
        ni, q = j>>1, j&1
        k.require("xdead11", "vwd")
        if j == 0: k.wait(vm=[("wd",i)])
        d = dst if dst else ar(32+8*(i%2)+4*ni+2*q, 2)
        k.require(f"wdi{i}_1"); k.provide(f"drd{i}_{j}")
        k.lds(("dw",i,ni), f"ds_read_b64_tr_b16 {d}, v{AWB if ni else AWA} offset:{pbyte(i)+q*1024}")
    wq_ = {i: [i+4] for i in range(14)} if not ND else {**{i: [i+4] for i in range(10)}, 10: [14,16], 11: [15,17], 12: [], 13: []}
    if ND: wq_[9] = [13,14]; wq_[10] = [15,16]; wq_[11] = [17]
    def d_op(i, j):
        ops = []
        hd = c["hd"]
        def f():
            ni, mi = j>>1, j&1
            k.require("xdead31", f"drd{i}_3", f"hli{i}_1")
            k.wait(lds=[("dw",i,ni)], vm=([("hl",i)] + ([("wd",i+1)] if i < 13 else [])) if j == 0 else [])
            acc = ar(64+16*(2*mi+ni),16)
            e(f"v_mfma_f32_32x32x16_bf16 {acc}, {ar(8*(i%4)+4*mi,4)}, {ar(32+8*(i%2)+4*ni,4)}, {'0' if i==0 else acc}")
            if i < 13: d_read(i+1, j)
            if j == 2: k.provide(f"dw_used{i}")
            if j == 3: k.provide(f"dstep{i}")
            if j < 2 and i+hd < 14: h_load(i+hd, j)()
            if j >= 2 and wq_[i]: wd_dma(wq_[i][0], j-2)()
            if j == 3:
                for x in wq_[i][1:]:
                    at(now[0]+0.05, wd_dma(x,0)); at(now[0]+0.06, wd_dma(x,1))
        if j == 2 and wq_[i]: f.pre = wd_dma(wq_[i][0], 0).pre
        return f
    gops = [gu_op(i) for i in range(64,96)] + [d_op(i,j) for i in range(14-ND) for j in range(4)]
    seg = c["seg"]
    def spread(n, T): return [ (n*(x+1))//T - (n*x)//T for x in range(T) ]
    ng = [0]*seg[0] + spread(32,seg[1])
    tM = seg[0]; GT = tM+seg[1]
    ng += spread(56-4*ND, 64-GT)
    assert sum(ng) == len(gops) and max(ng) <= 4, ng
    nep = [0]; curprio = [0]
    def epoch(ts, tc, pre=None, post=None):
        row = nep[0]; nep[0] += 1; assert row < 16
        snap = set()
        def sig():
            if pre: pre()
            snap.update(x for x in k.have if x.startswith(("fill_","done_")))
            k.lds(("sig",row), f"ds_write_b32 v{PW}, v{PW} offset:{32*row}")
        def rd(): lock("T0"); k.lds(("chk",row), f"ds_read_b32 v{T0}, v{PR} offset:{32*row}")
        def chk():
            unlock("T0")
            k.wait(lds=[("chk",row)])
            back = k.label("ep_b"); slow = k.label("ep_s")
            e(f"v_cmp_eq_u32 vcc, 0, v{T0}"); e(f"s_cbranch_vccnz {slow}"); k.raw(back+":")
            k.ool.append("\n".join([slow+":", f"    s_mov_b32 s{sCNT}, {c['spin']*16}", "    s_setprio 0", slow+"_l:",
                f"    ds_read_b32 v{T0}, v{PR} offset:{32*row}", "    s_waitcnt lgkmcnt(0)", f"    v_cmp_eq_u32 vcc, 0, v{T0}", "    s_nop 1",
                f"    s_cbranch_vccz {slow}_x", f"    s_sub_u32 s{sCNT}, s{sCNT}, 1", f"    s_cmp_lg_u32 s{sCNT}, 0", f"    s_cbranch_scc1 {slow}_l",
                slow+"_x:", f"    s_setprio {curprio[0]}", f"    s_branch {back}"]))
            k.provide(*("all:"+x for x in snap))
            if post: post()
        at(ts, sig); at(tc-0.3, rd); at(tc, chk)
    def kv_fetch(ch, tpoll, tdma):
        if ch <= 2:
            at(tpoll, lambda: kv_poll(ch)); at(tdma-0.01, lambda: kv_pick(ch))
        at(tdma, kv_dma(ch,0)); at(tdma+0.2, kv_dma(ch,1))
    def kv_landed(ch):
        def f(): k.require(f"kvi{ch}_1"); k.wait(vm=[("kvd",ch)]); k.provide(f"fill_KV{ch}")
        return f
    hld = f"buffer_load_dword v{T1}, v{VFL}, {sr(sWS,4)}, s{sFK} offen sc1"
    def h_flag(stage, tpoll, tchk):
        def poll():
            lock("T1"); k.require("vwg")
            if stage > 1: k.require(f"hflag{stage-1}")
            if stage in (2,3): e(f"s_add_u32 s{sFK}, s{sFK}, 0x40000")
            poll_issue(("hp",stage), 0xffff if stage < 4 else 0xff, [hld])
        def chk():
            unlock("T1")
            k.wait(vm=[("hp",stage)])
            spin_global("ho", 0xffff if stage < 4 else 0xff, [hld])
            k.provide(f"hflag{stage}")
        if tpoll is None: poll(); chk()
        else: at(tpoll, poll); at(tchk, chk)
    nm_ = len(c.get("k_m", []))
    for x in range(nm_, 4): at(c.get("t_m",1.2)+c.get("t_ms",0.6)*(x-nm_), w_dma("M",x))
    def hst(j):
        def f():
            k.require("prod")
            k.vm(("h",0), f"buffer_store_dwordx4 {vr(GB+4*j,4)}, v{AK}, {sr(sWS,4)}, s{sWQ2 if j else sXO} offen sc1"); k.provide(f"hst0{j}")
        return f
    th = c.get("t_h", 0.0)
    def poison():
        for i in range(4): e(f"v_mov_b32 v{GB+8+i}, -1")
        k.vm(("h",1), f"buffer_store_dwordx4 {vr(GB+8,4)}, v{AK}, {sr(sWS,4)}, s{sHOS} offen sc1")
    if c["poison"]:
        at(c.get("t_po", 9.0), poison)
        if c["e_lead"] > 1: at(64-c["e_lead"]/2, lambda: flag_store(4))
    at(th, hst(0)); at(th+c.get("t_hs",0.01), hst(1))
    def fl2(): k.require("hst01"); k.wait(vm=[("h",0)]); flag_store(2)
    at(th+3.4, fl2)
    def m_landed():
        if tM <= 6: kv_landed(1)()
        k.require("WiM3"); k.wait(vm=[("W","M")]); k.provide("fill_M")
    def m_first():
        for i in range(NWB): wread(64+i)
    if tM > 6: epoch(2.5, 5.5, kv_landed(1))
    epoch(tM-c.get("t_me",1.3), tM-0.2, m_landed, m_first)
    kv_fetch(2, c.get("t_p2",3.7), c.get("t_d2",6.2))
    epoch(max(9.5,c["t_d2"]+2.2), 12.5, kv_landed(2))
    kv_fetch(3, 10.6, 12.8)
    if c["pf"]: at(c.get("t_pf",7.0), touch([sWD], 7)); at(c.get("t_pf",7.0)+0.3, touch([sWO], 2))
    epoch(17.5, 21.0, kv_landed(3))
    kv_fetch(4, 0, 21.2)
    def vwg():
        k.require("WiM3", "kvflag2"); lock("T0"); unlock("T0")
        e(f"v_bfe_u32 v{T0}, v{AK}, 8, 1"); e(f"v_lshlrev_b32 v{T0}, 6, v{T0}")
        e(f"v_and_b32 v{VFL}, 0x70, v{AK}"); e(f"v_xor_b32 v{VWG}, v{VFL}, v{T0}")
        e(f"v_lshrrev_b32 v{T0}, 7, v{AK}"); e(f"v_lshl_add_u32 v{VWG}, v{T0}, 10, v{VWG}"); e(f"v_add_u32 v{VWG2}, {8192-1024}, v{VWG}")
        e(f"v_bfe_u32 v{T0}, v{AK}, 7, 1"); e(f"v_lshlrev_b32 v{VFL}, 3, v{VFL}"); e(f"v_lshl_add_u32 v{VFL}, v{T0}, 12, v{VFL}")
        e(f"s_lshr_b32 s3, s{sW}, 1"); e("s_lshl_b32 s3, s3, 10"); e(f"s_lshl_b32 s{sFK}, s{sMT}, 13"); e(f"s_add_u32 s{sFK}, s{sFK}, s3")
        k.provide("vwg")
    def vwd():
        k.require("done_U"); lock("T0"); unlock("T0")
        e(f"v_bfe_u32 v{T0}, v{AK}, 8, 1"); e(f"v_lshlrev_b32 v{AWA}, 5, v{T0}")
        e(f"v_bfe_u32 v{T0}, v{AK}, 6, 2"); e(f"v_lshl_add_u32 v{AWA}, v{T0}, 7, v{AWA}")
        e(f"v_and_b32 v{T0}, 0x200, v{AK}"); e(f"v_add_u32 v{AWA}, v{T0}, v{AWA}")
        e(f"v_bfe_u32 v{T0}, v{AK}, 4, 2"); e(f"v_lshl_add_u32 v{AWA}, v{T0}, 3, v{AWA}")
        e(f"v_bfe_u32 v{T0}, v{AK}, 7, 1"); e(f"v_lshl_add_u32 v{AWA}, v{T0}, 6, v{AWA}")
        e(f"v_xor_b32 v{AWB}, 64, v{AWA}")
        e(f"v_add_u32 v{AWA}, s{sWB}, v{AWA}"); e(f"v_add_u32 v{AWB}, s{sWB}, v{AWB}")
        k.provide("vwd")
    at(c.get("t_d2")+0.6, vwg); at(0.5, vwd)
    epoch(max(25.5,GT), 29.0, kv_landed(4))
    kv_fetch(5, 0, 29.2)
    for i in range(4):
        for q in range(2): at(max(GT-8, 10)+1.2*i+0.4*q, wd_dma(i,q))
    h_flag(1, 9.8, 11.4)
    h_flag(2, GT-5.6, GT-4.0)
    for i in range(c["hd"]):
        for mi in range(2): at(GT-3.0+1.0*i+0.4*mi, h_load(i,mi))
    for j in range(4): at(GT-1.4+0.25*j, lambda j=j: d_read(0,j))
    epoch(33.5, 37.0, kv_landed(5))
    kv_fetch(6, 0, 37.2)
    epoch(41.5, 45.0, kv_landed(6))
    tl = GT + (10-c["hd"])*4*(64-GT)/(56-4*ND)
    kv_fetch(7, 0, 45.2)
    epoch(49.5, 53.0, kv_landed(7))
    h_flag(3, tl-2.4, tl-0.9)

    abl0 = len(k.ins)
    k.keep = c.get("keep", 15)
    gi = 0
    ORD = {0:["PV2","QK","PV1"], 1:["PV2","QK","PV1","G"], 2:["PV2","QK","G","PV1","G"], 3:["PV2","QK","G","PV1","G","G"], 4:["PV2","G","QK","G","PV1","G","G"]}
    for t in range(64):
        if t % 8 in c["prio"]:
            curprio[0] = c["prio"][t%8]; e(f"s_setprio {curprio[0]}")
        if t in (tM,GT,40,52): stamp()
        if "tiles" in c and t in range(*c["tiles"]): stamp("tiles")
        S = Sb(t)
        ms = ORD[ng[t]]; n = len(ms); posn = {}
        for x, m in enumerate(ms):
            p = int(round(2 + 16*x/n)) % 16
            if m == "PV1": p = max(p, 10)
            if m == "QK": p = min(p, 5 if n <= 4 else 7)
            posn.setdefault(p, []).append(m)
        for p in range(16):
            now[0] = t + p/16
            for m in posn.get(p, []):
                g_ = gops[gi] if m == "G" else None
                if g_ is not None and hasattr(g_, "pre"): g_.pre()
                elif side and side[0][0] <= now[0] and hasattr(side[0][1], "pre") and not (g_ is not None and gi >= 32): side[0][1].pre()
                if m == "PV2":
                    if t > 0: PV(t-1, 1)
                    rV(t, 1)
                elif m == "QK":
                    if t < 63: QK(t+1)
                    rK(t+2)
                elif m == "PV1":
                    PV(t, 0); rV(t+1, 0)
                else:
                    g_(); gi += 1
                ns = 1 if (m == "G" and gi > 32) else 0
                while side and side[0][0] <= now[0] - 0.35*ns:
                    side.pop(0)[1](); ns += 1
            while vside and vside[0][0] <= now[0]:
                vside.pop(0)[1]()
            e(f"v_exp_f32 v{S+p}, v{S+p}")
    assert not vside and gi == len(gops), (side, vside)
    k.keep = 15
    e("s_setprio 3")
    PV(63, 1)
    while side: side.pop(0)[1]()
    abl = c.get("abl", "").split(",")
    if abl != [""]:
        keep = []
        import re as _re
        for ins in k.ins[abl0:]:
            t_ = ins.text
            if "vmwait" in abl and ins.op == "s_waitcnt" and "vmcnt" in t_:
                t2 = _re.sub(r"vmcnt\(\d+\) ?", "", t_).strip()
                if t2 == "s_waitcnt": continue
                ins = Ins(t2)
            if "vmem" in abl and ins.kind == "vmem" and not ("store_dword " in t_): continue
            if "branch" in abl and ins.op.startswith("s_cbranch"): continue
            if "prio" in abl and ins.op == "s_setprio": continue
            if "salu" in abl and ins.kind == "salu" and ins.op.startswith(("s_add","s_and","s_lshl","s_mul","s_lshr")): continue
            if "sig" in abl and ins.kind == "valu" and ins.w and ins.w[0][0] == "v" and GA <= ins.w[0][1] < WB: continue
            keep.append(ins)
        k.ins[abl0:] = keep
        e("s_waitcnt vmcnt(0) lgkmcnt(0)")
    stamp()
    if c["poison"] and c["e_lead"] == 1: flag_store(4)
    lo, hi = (2.0**-40, 2.0**40) if not c["force_fb"] else (2.0**40, 2.0**41)
    e(f"s_mov_b32 s{sT}, {hex(f2u(lo))}"); e(f"s_mov_b32 s{sT2}, {hex(f2u(hi))}")
    e(f"v_mov_b32 v{O+9}, v{O+8}"); e(f"v_permlane32_swap_b32 v{O+8}, v{O+9}")
    e(f"v_cmp_le_f32 s[98:99], s{sT}, v{O+8}")
    e(f"v_cmp_ge_f32 vcc, s{sT2}, v{O+8}"); e(f"s_and_b64 vcc, vcc, s[98:99]")
    e("s_cmp_eq_u64 vcc, -1"); e("s_cbranch_scc0 L_fallback")
    k.raw("L_fb_back:")
    e(f"v_rcp_f32 v{T0}, v{O+8}"); e(f"v_mul_f32 v{T0}, v{T0}, v{VG}")
    for i in range(8): e(f"v_mul_f32 v{O+i}, v{O+i}, v{T0}")
    for i in range(4): e(f"v_cvt_pk_bf16_f32 v{O+i}, v{O+2*i}, v{O+2*i+1}")
    if c["poison"]:
        for i in range(4): e(f"v_min_u32 v{O+i}, -2, v{O+i}")
    k.vm("o", f"buffer_store_dwordx4 {vr(O,4)}, v{AK}, {sr(sWS,4)}, s{sHOS} offen sc1")
    if c["poison"] and c["e_lead"] == 0: flag_store(4)
    e("s_setprio 0")
    worder = [(i,j) for i in range(14,18) for j in range(4)]
    def wo_reads(n):
        for _ in range(n):
            if worder:
                i, j = worder.pop(0); d_read(i, j, vr(GA+8*(i-14)+2*j, 2))
    for i in range(14-ND, 14):
        for j in range(4):
            d_op(i,j)(); wo_reads(1 if i < 13 else 2)
    if not c["poison"]: k.wait(vm=["o"]); flag_store(4)
    wo_reads(16)
    RR = WB
    e(f"v_lshrrev_b32 v0, 8, v{AK}"); e(f"v_and_b32 v{T0}, 0xf0, v{AK}"); e(f"v_lshl_add_u32 v{RR}, v0, 11, v{T0}")
    e(f"s_lshr_b32 s3, s{sW}, 2"); e("s_lshl_b32 s3, s3, 16"); e(f"s_and_b32 s{sT}, s{sW}, 3"); e(f"s_lshl_b32 s{sT}, s{sT}, 13"); e(f"s_add_u32 s3, s3, s{sT}")
    e(f"v_add_u32 v{RR}, s3, v{RR}")
    e(f"v_bfe_u32 v{T0}, v{AK}, 7, 1"); e(f"v_lshl_add_u32 v0, v{T0}, 2, v0"); e(f"v_bfe_u32 v{T0}, v{AK}, 4, 3"); e(f"v_lshlrev_b32 v{T0}, 3, v{T0}")
    e(f"v_lshl_add_u32 v{RR+1}, v0, 10, v{T0}")
    e(f"s_lshl_b32 s{sXO}, s{sMT}, 16"); e(f"s_lshl_b32 s3, s{sW}, 13"); e(f"s_add_u32 s{sXO}, s{sXO}, s3"); e(f"s_lshl_b32 s3, s{sNT}, 7"); e(f"s_add_u32 s{sXO}, s{sXO}, s3")
    e(f"v_and_b32 v{VFL}, 0x30, v{AK}"); e(f"v_lshlrev_b32 v{VFL}, 3, v{VFL}"); e(f"v_bfe_u32 v{T0}, v{AK}, 6, 1"); e(f"v_lshl_add_u32 v{VFL}, v{T0}, 12, v{VFL}")
    e(f"s_lshl_b32 s3, s{sW}, 9"); e(f"s_lshl_b32 s{sFK}, s{sMT}, 13"); e(f"s_add_u32 s{sFK}, s{sFK}, s3"); e(f"s_add_u32 s{sFK}, s{sFK}, 0xc0000")
    e(f"s_mul_i32 s{sHOL}, s{sMT}, {HO_T}"); e(f"s_lshl_b32 s3, s{sW}, 13"); e(f"s_add_u32 s{sHOL}, s{sHOL}, s3"); e(f"s_add_u32 s{sHOL}, s{sHOL}, {WS_HO+112*2048}")
    e(f"s_add_u32 s{sT}, s{sHOL}, 4096")
    e(f"s_lshl_b32 s{sWDO}, s{sW}, 8"); setm0(sWDO, 0)
    k.wait_all(lds=True, vm=False)
    e("s_barrier")
    stamp()
    h_flag(4, None, None)
    stamp()
    OF = SA
    old = lambda i, mi: f"buffer_load_dwordx4 {vr(OF+8*i+4*mi,4)}, v{AK}, {sr(sWS,4)}, s{sHOL if i < 2 else sT} offen offset:{(i&1)*2048+mi*1024} sc1"
    for i in range(4):
        for mi in range(2):
            k.vm(("ol",i), old(i,mi))
    for i in range(4):
        k.wait(vm=[("ol",i)])
        if c["poison"]:
            a_ = OF+8*i
            test = [f"v_max3_u32 v{T0}, v{a_}, v{a_+1}, v{a_+2}", f"v_max3_u32 v{T1}, v{a_+3}, v{a_+4}, v{a_+5}", f"v_max3_u32 v{T0}, v{T0}, v{a_+6}, v{a_+7}",
                    f"v_max_u32 v{T0}, v{T0}, v{T1}", f"v_cmp_eq_u32 vcc, -1, v{T0}"]
            back = k.label("ov_b"); slow = k.label("ov_s")
            for t_ in test: e(t_)
            e(f"s_cbranch_vccnz {slow}"); k.raw(back+":")
            k.ool.append("\n".join([slow+":", f"    s_mov_b32 s{sCNT}, {c['spin']}", slow+"_l:", "    "+old(i,0), "    "+old(i,1), "    s_waitcnt vmcnt(0)"]
                + ["    "+t_ for t_ in test] + ["    s_nop 1", f"    s_cbranch_vccz {back}", f"    s_sub_u32 s{sCNT}, s{sCNT}, 1", f"    s_cmp_lg_u32 s{sCNT}, 0", f"    s_cbranch_scc1 {slow}_l", f"    s_branch {back}"]))
        for j in range(4):
            mi, ni = j>>1, j&1
            acc = ar(64+16*(2*mi+ni),16)
            e(f"v_mfma_f32_32x32x16_bf16 {acc}, {vr(OF+8*i+4*mi,4)}, {vr(GA+8*i+4*ni,4)}, {acc}")
    for r_ in range(64):
        if r_ == 32: setm0(sWDO, 63616); e("s_nop 0")
        k.lds("rw", f"ds_write_addtid_b32 {ar(64+r_)} offset:{r_*2048 if r_ < 32 else (r_-32)*2048+1920}")
    k.wait_all(lds=True, vm=False)
    e("s_barrier")
    stamp()
    RD = 32
    for p in range(8):
        for x in range(2):
            k.lds(("rr",p), f"ds_read_b128 {vr(RD+8*p+4*x,4)}, v{RR} offset:{x*32768+p*256}")
    for p in range(1,8):
        k.wait(lds=[("rr",p)])
        for i in range(4): e(f"v_pk_add_f32 {vr(RD+2*i,2)}, {vr(RD+2*i,2)}, {vr(RD+8*p+2*i,2)}")
    for i in range(4): e(f"v_cvt_pk_bf16_f32 v{RD+i}, v{RD+2*i}, v{RD+2*i+1}")
    for x in range(2):
        k.vm("out", f"buffer_store_dwordx2 {vr(RD+2*x,2)}, v{RR+1}, {sr(sOUT,4)}, s{sXO} offen offset:{64*x} {c['outmod']}")
    if "diag_pad" in c: k.wait_all(); stamp("end")
    if c["stamps"]:
        k.wait_all(); stamp("end")
        e("s_memrealtime s[98:99]"); e("s_waitcnt lgkmcnt(0)")
        e(f"s_lshl_b32 s3, s2, 3"); e(f"s_add_u32 s3, s3, s{sW}"); e("s_lshl_b32 s3, s3, 7"); e(f"s_add_u32 s3, s3, {WS_ST}")
        vals = ["s100","s98","s101"] + [f"s{sST+i}" for i in range(nst[0])]
        for i, v in enumerate(vals):
            e(f"v_mov_b32 v{T0}, {v}"); e(f"buffer_store_dword v{T0}, off, {sr(sWS,4)}, s3 offset:{4*i}")
    k.raw("L_end:")
    e("s_endpgm")
    f = K(); g = f.e
    f.raw("L_fallback:")
    g("s_waitcnt vmcnt(0) lgkmcnt(0)")
    MX = T0; CN = SB
    g(f"v_mov_b32 v{MX}, 0xff800000"); g(f"s_lshl_b32 s{sT2}, s{sH}, 17"); g(f"s_add_u32 s{sT2}, s{sT2}, {WS_KV}"); g(f"s_mov_b32 s{sCNT}, 64")
    f.raw("L_fb1:")
    g(f"buffer_load_dwordx4 {vr(KF,4)}, v{AK}, {sr(sWS,4)}, s{sT2} offen sc1"); g("s_waitcnt vmcnt(0)")
    g(f"v_mfma_f32_32x32x16_bf16 {vr(SA,16)}, {vr(KF,4)}, {vr(Q,4)}, 0")
    for i in range(8): g(f"v_max3_f32 v{MX}, v{MX}, v{SA+2*i}, v{SA+2*i+1}")
    g(f"s_add_u32 s{sT2}, s{sT2}, 2048"); g(f"s_sub_u32 s{sCNT}, s{sCNT}, 1"); g(f"s_cmp_lg_u32 s{sCNT}, 0"); g("s_cbranch_scc1 L_fb1")
    g(f"v_mov_b32 v{T1}, v{MX}"); g(f"v_permlane32_swap_b32 v{MX}, v{T1}"); g(f"v_max_f32 v{MX}, v{MX}, v{T1}")
    for i in range(16): g(f"v_sub_f32 v{CN+i}, 0, v{MX}")
    for i in range(16): g(f"v_mov_b32 v{O+i}, 0")
    for i in range(8): g(f"v_mov_b32 v{VF+i}, 0x3f803f80")
    g(f"s_lshl_b32 s{sT2}, s{sH}, 17"); g(f"s_add_u32 s{sT2}, s{sT2}, {WS_KV}"); g(f"s_mov_b32 s{sCNT}, 64")
    f.raw("L_fb2:")
    g(f"buffer_load_dwordx4 {vr(KF,4)}, v{AK}, {sr(sWS,4)}, s{sT2} offen sc1")
    g("s_mov_b32 exec_lo, 0xffff"); g("s_mov_b32 exec_hi, 0xffff")
    g(f"buffer_load_dwordx4 {vr(VF,4)}, v{AV0}, {sr(sWS,4)}, s{sT2} offen sc1")
    g(f"buffer_load_dwordx4 {vr(VF+4,4)}, v{AV1}, {sr(sWS,4)}, s{sT2} offen sc1")
    g("s_mov_b64 exec, -1"); g("s_waitcnt vmcnt(0)")
    g(f"v_mfma_f32_32x32x16_bf16 {vr(SA,16)}, {vr(KF,4)}, {vr(Q,4)}, {vr(CN,16)}")
    for i in range(16): g(f"v_exp_f32 v{SA+i}, v{SA+i}")
    g(f"v_smfmac_f32_32x32x32_bf16 {vr(O,16)}, {vr(VF,4)}, {vr(SA,8)}, v{IDX}")
    g(f"v_smfmac_f32_32x32x32_bf16 {vr(O,16)}, {vr(VF+4,4)}, {vr(SA+8,8)}, v{IDX}")
    g(f"s_add_u32 s{sT2}, s{sT2}, 2048"); g(f"s_sub_u32 s{sCNT}, s{sCNT}, 1"); g(f"s_cmp_lg_u32 s{sCNT}, 0"); g("s_cbranch_scc1 L_fb2")
    g("s_nop 15"); g("s_branch L_fb_back")

    hdr = open("cdna_kernels/%s.s.ref" % NAME).read().split("; Override launch geometry")[0]
    out = hdr + f"; @launch grid=(256,1,1) block=(512,1,1) lds={LDS_BYTES}\n"
    out += f""".amdgcn_target "amdgcn-amd-amdhsa--gfx950"
.text
.globl {NAME}_kernel
.p2align 8
.type {NAME}_kernel,@function
{NAME}_kernel:
"""
    out += k.text() + "\n" + "\n".join(var_text) + "\n" + kv_.text() + "\n" + "\n".join(k.ool) + "\n" + f.text() + f"""
L_code_end:
; unreachable filler so that the 40 KiB instruction prefetch window stays inside the section
; CODE_SIZE_CHECK
.fill (41472 - (L_code_end - {NAME}_kernel)) / 4, 4, 0xbf810000
.section .rodata,"a"
.p2align 6
.amdhsa_kernel {NAME}_kernel
  .amdhsa_next_free_vgpr 256
  .amdhsa_next_free_sgpr 102
  .amdhsa_accum_offset 256
  .amdhsa_group_segment_fixed_size 0
  .amdhsa_kernarg_size 88
  .amdhsa_user_sgpr_count 2
  .amdhsa_user_sgpr_kernarg_segment_ptr 1
  .amdhsa_system_sgpr_workgroup_id_x 1
.end_amdhsa_kernel
"""
    sys.stderr.write(f"instrs {len(k.ins)} nops {k.nops} ng {''.join(map(str,ng))}\n")
    return out

if __name__ == "__main__":
    import json
    cfg = json.loads(sys.argv[2]) if len(sys.argv) > 2 else {}
    if "prio" in cfg: cfg["prio"] = {int(a): b for a, b in cfg["prio"].items()}
    open(sys.argv[1], "w").write(gen(cfg))
```

```python
import re

TRANS = ("v_exp_f32","v_rcp_f32","v_log_f32","v_rsq_f32","v_sqrt_f32")

def regs_of(tok):
    tok = tok.strip()
    tok = tok.lstrip("-")
    if tok.startswith("abs(") : tok = tok[4:-1]
    if tok.startswith("|"): tok = tok.strip("|")
    m = re.fullmatch(r"([vas])(\d+)", tok)
    if m: return [(m.group(1), int(m.group(2)))]
    m = re.fullmatch(r"([vas])\[(\d+):(\d+)\]", tok)
    if m: return [(m.group(1), i) for i in range(int(m.group(2)), int(m.group(3))+1)]
    if tok == "vcc": return [("s","vcc")]
    if tok in ("vcc_lo","vcc_hi"): return [("s","vcc")]
    if tok == "m0": return [("s","m0")]
    if tok in ("exec","exec_lo","exec_hi"): return [("s","exec")]
    return []

class Ins:
    def __init__(s, text):
        s.text = text
        t = text.split(";")[0].strip()
        s.label = t.endswith(":")
        s.directive = t.startswith(".")
        s.op = t.split()[0] if t else ""
        rest = t[len(s.op):].strip()
        rest = re.sub(r"\s+op_sel(_hi)?:\[[01,]+\]", "", rest)
        ops = [x.strip() for x in rest.split(",")] if rest else []
        mods = ""
        if ops:
            parts = ops[-1].split()
            ops[-1] = parts[0]; mods = " ".join(parts[1:])
        s.ops = ops; s.mods = mods
        s.w = []; s.r = []; s.c = []
        op = s.op
        s.kind = "other"
        s.states = 1
        if s.label or s.directive or not op:
            s.kind = "none"; s.states = 0; return
        if op == "s_nop":
            s.kind = "nop"; s.states = int(ops[0]) + 1; return
        if op.startswith("v_smfmac"):
            s.kind = "mfma"; s.passes = 8
            s.w = regs_of(ops[0]); s.r = regs_of(ops[1]) + regs_of(ops[2]) + regs_of(ops[3]); s.c = regs_of(ops[0])
        elif op.startswith("v_mfma"):
            s.kind = "mfma"
            s.passes = 2 if "4x4x4" in op else (8 if "32x32x16" in op else 4)
            s.w = regs_of(ops[0]); s.r = regs_of(ops[1]) + regs_of(ops[2]); s.c = regs_of(ops[3])
        elif op.startswith("v_"):
            s.kind = "valu"
            s.trans = op.replace("_e32","").replace("_e64","") in TRANS
            if op.startswith("v_permlane") and "swap" in op:
                s.w = regs_of(ops[0]) + regs_of(ops[1]); s.r = list(s.w)
            elif op.startswith(("v_add_co","v_addc_co")):
                s.w = regs_of(ops[0]) + regs_of(ops[1])
                for o in ops[2:]: s.r += regs_of(o)
            else:
                s.w = regs_of(ops[0])
                for o in ops[1:]: s.r += regs_of(o)
                if op.startswith(("v_fmac","v_dot2c")) : s.r += regs_of(ops[0])
        elif op.startswith("ds_"):
            s.kind = "ds"
            if op.startswith("ds_read"):
                s.w = regs_of(ops[0]); s.r = regs_of(ops[1])
            else:
                for o in ops: s.r += regs_of(o)
                s.data = regs_of(ops[1]) if op.endswith("b128") else []
        elif op.startswith("buffer_") or op.startswith("global_"):
            s.kind = "vmem"
            s.dma = " lds" in (" " + mods)
            s.data = []
            if op.startswith("buffer_atomic") and "sc0" in mods:
                s.w = regs_of(ops[0])
                for o in ops: s.r += regs_of(o)
            elif op.startswith("buffer_load") and not s.dma:
                s.w = regs_of(ops[0])
                for o in ops[1:]: s.r += regs_of(o)
            elif op.startswith("global_load") and not s.dma:
                s.w = regs_of(ops[0])
                for o in ops[1:]: s.r += regs_of(o)
            else:
                for o in ops: s.r += regs_of(o)
                if s.dma: s.r += [("s","m0")]
                if op == "buffer_store_dwordx4": s.data = regs_of(ops[0])
        elif op.startswith("s_"):
            s.kind = "salu"
            if op.startswith(("s_cmp","s_bitcmp","s_cbranch","s_branch","s_waitcnt","s_barrier","s_setprio","s_endpgm")):
                for o in ops: s.r += regs_of(o)
            else:
                if ops: s.w = regs_of(ops[0])
                for o in ops[1:]: s.r += regs_of(o)

def need_states(p, c):
    n = 0
    pw = set(p.w); cr = set(c.r); cw = set(c.w); cc = set(c.c)
    vw = {x for x in pw if x[0] in "va"}
    sw = {x for x in pw if x[0] == "s"}
    if p.kind == "valu":
        if c.kind == "mfma" and vw & (cr | cc): n = max(n, 2)
        if c.kind == "valu":
            if p.trans and vw & cr: n = max(n, 1)
            if p.op.startswith("v_dot") and vw & (cr | cw):
                same_c = c.op == p.op and not (vw & set(regs_of(c.ops[1]) + regs_of(c.ops[2])))
                if not same_c: n = max(n, 3)
            if c.op.startswith(("v_readfirstlane","v_readlane")) and vw & cr: n = max(n, 1)
            if c.op.startswith("v_permlane") and vw & cr: n = max(n, 2)
            if "dpp" in c.text and vw & cr: n = max(n, 2)
            if sw & cr: n = max(n, 2)
        if c.kind == "vmem" and sw & cr: n = max(n, 5)
        if c.kind == "salu" and sw & cr: n = max(n, 1)
        if p.trans and c.kind in ("ds","vmem") and vw & cr: n = max(n, 1)
    if p.kind == "mfma":
        big = {2:5, 4:8, 8:12}[p.passes]
        if c.kind in ("valu","ds","vmem") and vw & (cr | cw): n = max(n, big)
        if c.kind == "mfma":
            if vw & cr: n = max(n, big)
            if vw & cc:
                if cc == vw and c.passes == p.passes: n = max(n, 2 if p.passes == 2 else 0)
                else: n = max(n, {2:4, 4:6, 8:10}[p.passes])
            elif vw & cw and c.passes != p.passes: n = max(n, big)
        if c.kind == "valu" and set(p.c) & cw: n = max(n, {2:1, 4:3, 8:7}[p.passes])
    if p.kind == "salu" and ("s","m0") in pw and c.kind == "vmem" and c.dma: n = max(n, 1)
    if p.kind in ("vmem","ds") and getattr(p, "data", None):
        if set(p.data) & cw: n = max(n, 2)
    return n

class K:
    def __init__(s):
        s.ins = []
        s.lq = []
        s.vq = []
        s.have = set()
        s.nops = 0
        s.ool = []
        s.verify = True
        s.keep = 15
        s.nl = 0
    def label(s, base):
        s.nl += 1
        return f"L_{base}_{s.nl}"
    def raw(s, text):
        s.ins.append(Ins(text))
    def e(s, text):
        for line in text.split("\n"):
            line = line.strip()
            if not line: continue
            s._emit(Ins(line))
    def _emit(s, c):
        if c.kind not in ("none","nop"):
            dist = 0; need = 0
            for p in reversed(s.ins):
                if dist >= 13: break
                if p.kind not in ("none","nop"):
                    k = need_states(p, c)
                    if k - dist > need: need = k - dist
                dist += p.states
            if need > 0:
                s.ins.append(Ins(f"s_nop {need-1}")); s.nops += need
            if s.verify:
                touched = set(c.r) | set(c.w) | set(c.c)
                for q, nm in ((s.lq,"lgkm"),(s.vq,"vm")):
                    for tag, regs in q:
                        if touched & regs:
                            raise Exception(f"pending {nm} load {tag} touches regs of: {c.text}")
        s.ins.append(c)
    def lds(s, tag, text):
        c = Ins(text); s._emit(c); s.lq.append((tag, set(c.w)))
    def vm(s, tag, text):
        c = Ins(text); s._emit(c); s.vq.append((tag, set(c.w)))
    def _need(s, q, tags):
        idx = [i for i,(t,_) in enumerate(q) if t in tags]
        if not idx: return None
        last = max(idx)
        return len(q) - 1 - last
    def wait(s, lds=(), vm=()):
        parts = []
        n = s._need(s.vq, vm)
        if n is not None:
            n = min(n, 63)
            parts.append(f"vmcnt({n})"); s.vq = s.vq[len(s.vq)-n:] if n else []
        n = s._need(s.lq, lds)
        if n is not None:
            n = min(n, 15, s.keep)
            parts.append(f"lgkmcnt({n})"); s.lq = s.lq[len(s.lq)-n:] if n else []
        if parts: s.e("s_waitcnt " + " ".join(parts))
    def wait_all(s, lds=True, vm=True):
        parts = []
        if vm: parts.append("vmcnt(0)"); s.vq = []
        if lds: parts.append("lgkmcnt(0)"); s.lq = []
        s.e("s_waitcnt " + " ".join(parts))
    def provide(s, *tags): s.have.update(tags)
    def require(s, *tags):
        for t in tags:
            if t not in s.have: raise Exception(f"order violation: {t} not provided yet")
    def text(s):
        out = []
        for i in s.ins:
            out.append(i.text if (i.label or i.directive) else "    " + i.text)
        return "\n".join(out)

def vr(b, n=1, p="v"):
    return f"{p}{b}" if n == 1 else f"{p}[{b}:{b+n-1}]"
def ar(b, n=1): return vr(128+b, n, "v")
def sr(b, n=1): return vr(b, n, "s")
```

```python
import sys, math, struct
from asmlib import *

NAME = "gated_mix__mha_block__glu_gated_glu__prompt"
LOG2E = 1.4426950408889634
def f2u(x): return struct.unpack("<I", struct.pack("<f", x))[0]

KVT = 2064; KVS = 8*KVT
GW_L = 49664; PROG = 50688; RA = 51200; WV = 12288
JUNK = GW_L
LDS_BYTES = RA + 8*WV + 256
WS_KV = 0x100000; WS_HO = 0x500000; HO_T = 144*2048; WS_ST = 0x1000000; WS_Q = 0x1100000; WS_Z = 0x1500000; WS_SZ = 0x2000000
IDX = 0
AK,AV0,AV1,AWA,AWB,VC,VG,PW,PR,T0,T1,VWG,VFL,VD0,VD1 = range(1,16)
Q=16; KF=20; VF=24; SA=32; SB=48; O=64; GA=80; GB=96; WB=112; TT=124
VWG2 = TT; VWM = TT+1
sX,sWA,sWO,sWG,sWU,sWD,sGW,sOUT,sDBG,sWS,sWB2,sDBL = range(4,52,4)
sW,sH,sR,sROT,sMT,sNT,sWB,sM,sROLE = range(52,61)
sXO,sW10,sK0,sCA,sCB,sSTR,sWQO,sWQ2 = range(61,69)
sKVO,sKVW,sFO,sFK,sHOS,sHOL,sWDO,sWGO,sWMO,sHC,sQO,sLK = range(69,81)
sT,sT2,sCNT = range(81,84)
sHL = 1
sST = 84

DEF = dict(stamps=False, hd=2, spin=1<<20, rot="h2r", seg=[9,17], pf=True, nd=2, nwb=3, keep=2,
           prio={0:3,3:2,6:1,7:0}, force_fb=False, touch=True, outmod="nt", nu=32, segu=[4,16], t_ue=1.2, dh=0.3,
           pre_g=0, pre3=24, pre_u=0, post_u=0, gd=3, gprio=False, poison=False, e_lead=0,
           k_st=[1,2,3,4], k_zs=6, k_u=[16,19,29,33], k_flag=16, k_poll=30, k_chk=40, k_b=56, k_m=[62], t_m=1.7, t_ms=1.5,
           t_h=10.3, t_hs=0.9, t_me=1.8, t_p2=7.0, t_d2=8.9, t_pf=13.2, t_po=15, vtouch={"m":50})

def gen(cfg):
    c = dict(DEF); c.update(cfg)
    k = K(); e = k.e
    assert all(a < b for a, b in zip([0]+c["k_st"], c["k_st"])) and all(v < c["k_b"] for v in c["vtouch"].values())
    NWB = c["nwb"]; ND = c["nd"]
    nst = [0]; npt = [0]
    locks = set()
    def lock(x):
        assert x not in locks, x
        locks.add(x)
    def unlock(x): locks.remove(x)
    clk = "s_memrealtime" if c["stamps"] == "rt" else "s_memtime"
    def stamp(grp="main"):
        if grp in ("main","end"):
            if c.get("diag_pad") == npt[0]:
                k.wait_all(lds=True, vm=False)
                k.raw("L_pad:"); e("s_memrealtime s[98:99]"); e("s_waitcnt lgkmcnt(0)"); e("s_sub_u32 s98, s98, s100"); e("s_cmp_lt_u32 s98, 6000"); e("s_cbranch_scc1 L_pad")
            npt[0] += 1
        if not c["stamps"]: return
        if grp not in c.get("stgrp","main").split(",") and grp != "end": return
        i = nst[0]; nst[0] += 1
        assert i < 14
        e(clk + " s[98:99] ; STAMP"); k.wait_all(lds=True, vm=False)
        e(f"s_mov_b32 s{sST+i}, s98")
    m0 = [None]
    def setm0(base, off):
        if m0[0] == (base, off): return
        m0[0] = (base, off)
        if base is None: e(f"s_mov_b32 m0, {off}")
        elif off == 0: e(f"s_mov_b32 m0, s{base}")
        else: e(f"s_add_u32 m0, s{base}, {off}")
    def dma(tag, voff, rs, so, base, off, imm=0, sc1=False):
        setm0(base, off)
        k.vm(tag, f"buffer_load_dwordx4 v{voff}, {sr(rs,4)}, {so} offen" + (f" offset:{imm}" if imm else "") + (" sc1" if sc1 else "") + " lds")
    def srd23(s, n): e(f"s_mov_b32 s{s+2}, {n}"); e(f"s_mov_b32 s{s+3}, 0x20000")

    X0=64; XR=68; T0R=72; GWR=74; VWS=75; TRB=77; U0=78; U1=79
    e(f"s_load_dwordx2 {sr(sX,2)}, s[0:1], 0"); e(f"s_load_dwordx2 {sr(sWA,2)}, s[0:1], 8")
    e(f"s_load_dwordx2 {sr(sWG,2)}, s[0:1], 32"); e(f"s_load_dwordx2 {sr(sWU,2)}, s[0:1], 40"); e(f"s_load_dwordx2 {sr(sGW,2)}, s[0:1], 56")
    if c["stamps"] or "diag_pad" in c:
        e("s_memrealtime s[100:101]"); e(clk + " s[98:99]"); e("s_waitcnt lgkmcnt(0)"); e("s_mov_b32 s101, s98")
    e("s_cmp_ge_u32 s2, 256"); e("s_cbranch_scc1 L_end")
    if c["touch"]:
        e("s_getpc_b64 s[98:99]"); e("s_bfe_u32 s3, s2, 0x20003"); e("s_lshl_b32 s3, s3, 13")
        e("v_and_b32 v1, 0x1f8, v0"); e("v_lshl_add_u32 v1, v1, 4, s3")
        e("v_mov_b32 v3, s99"); e("v_add_co_u32 v2, vcc, s98, v1")
        e(f"v_lshrrev_b32 v{T0}, 6, v0"); e(f"v_and_b32 v0, 63, v0")
        e("v_addc_co_u32 v3, vcc, 0, v3, vcc")
        k.vm("touch", f"global_load_dword v{TT}, v[2:3], off")
    else:
        e(f"v_lshrrev_b32 v{T0}, 6, v0"); e(f"v_and_b32 v0, 63, v0")
    e(f"v_readfirstlane_b32 s{sW}, v{T0}")
    e(f"s_and_b32 s{sT}, s2, 7"); e(f"s_lshr_b32 s{sT2}, s2, 3")
    if True:
        e(f"s_and_b32 s{sR}, s2, 1"); e(f"s_lshr_b32 s{sMT}, s2, 6"); e(f"s_lshl2_add_u32 s{sR}, s{sR}, s{sMT}")
        e(f"s_and_b32 s{sNT}, s{sT2}, 7"); e(f"s_lshr_b32 s{sH}, s{sT}, 1"); e(f"s_lshl3_add_u32 s{sH}, s{sH}, s{sNT}")
    if c["rot"] == "h2r": e(f"s_lshl1_add_u32 s{sROT}, s{sR}, s{sH}"); e(f"s_and_b32 s{sROT}, s{sROT}, 7")
    elif c["rot"] == "none": e(f"s_mov_b32 s{sROT}, 0")
    elif c["rot"] == "p4": e(f"s_and_b32 s3, s{sH}, 3"); e(f"s_lshl_b32 s{sROT}, s3, 1")
    elif c["rot"] == "xr":
        e(f"s_lshr_b32 s{sROT}, s{sT}, 1"); e(f"s_and_b32 s3, s{sT}, 1"); e(f"s_lshl1_add_u32 s{sROT}, s3, s{sROT}")
        e(f"s_lshl2_add_u32 s{sROT}, s{sH}, s{sROT}"); e(f"s_and_b32 s{sROT}, s{sROT}, 7")
    elif c["rot"] == "x1":
        e(f"s_and_b32 s{sROT}, s2, 6"); e(f"s_lshl2_add_u32 s{sROT}, s2, s{sROT}"); e(f"s_and_b32 s{sROT}, s{sROT}, 7")
    elif c["rot"] == "xs":
        e(f"s_lshr_b32 s{sROT}, s{sT}, 1"); e(f"s_and_b32 s3, s{sT}, 1"); e(f"s_lshl1_add_u32 s{sROT}, s3, s{sROT}")
        e(f"s_add_u32 s3, s{sH}, s{sR}"); e(f"s_lshl2_add_u32 s{sROT}, s3, s{sROT}"); e(f"s_and_b32 s{sROT}, s{sROT}, 7")
    elif c["rot"] == "y4":
        e(f"s_bfe_u32 s{sROT}, s2, 0x10001"); e(f"s_add_u32 s3, s{sH}, s{sR}"); e(f"s_lshl1_add_u32 s{sROT}, s3, s{sROT}"); e(f"s_and_b32 s{sROT}, s{sROT}, 7")
    elif c["rot"] == "x4":
        e(f"s_bfe_u32 s{sROT}, s2, 0x10001"); e(f"s_lshl1_add_u32 s{sROT}, s{sH}, s{sROT}"); e(f"s_and_b32 s{sROT}, s{sROT}, 7")
    e(f"s_lshl2_add_u32 s{sMT}, s{sT}, s{sMT}")
    e(f"v_lshrrev_b32 v{U0}, 4, v0"); e(f"v_and_b32 v{U1}, 7, v0"); e(f"v_xor_b32 v{U0}, v{U0}, v{U1}")
    e(f"v_lshlrev_b32 v{U0}, 4, v{U0}"); e(f"v_lshrrev_b32 v{U1}, 3, v0"); e(f"v_lshl_add_u32 v{X0}, v{U1}, 10, v{U0}")
    e(f"v_xor_b32 v{X0+1}, 64, v{X0}"); e(f"v_add_u32 v{X0+1}, {8192-1024}, v{X0+1}")
    e(f"v_add_u32 v{X0+2}, {16384-2048}, v{X0}"); e(f"v_add_u32 v{X0+3}, {16384-2048}, v{X0+1}")
    e(f"s_mul_i32 s{sWB}, s{sW}, {WV}"); e(f"s_add_u32 s{sWB}, s{sWB}, {RA}")
    e(f"s_lshl3_add_u32 s{sM}, s{sR}, s{sW}")
    e(f"s_lshl_b32 s{sXO}, s{sM}, 15")
    srd23(sX, 2048*512*2)
    def x_dma(j):
        def f(i):
            def g_():
                if i == 0:
                    if j: e(f"s_add_u32 s3, s{sROT}, {j}"); e("s_and_b32 s3, s3, 7"); e("s_lshl_b32 s3, s3, 7")
                    else: e(f"s_lshl_b32 s3, s{sROT}, 7")
                    setm0(sWB, (j%3)*4096)
                    e(f"s_add_u32 s{sCNT}, s3, s{sXO}")
                    if j == 0: e("s_waitcnt lgkmcnt(0)")
                dma(("x",j), X0+i, sX, f"s{sCNT}", sWB, (j%3)*4096, imm=i*1024)
            return g_
        return [f(i) for i in range(4)]
    stamp("s1")
    for f_ in x_dma(0): f_()
    e(f"v_lshlrev_b32 v{AK}, 4, v0"); srd23(sGW, 1024)
    e(f"s_lshl_b32 s{sT2}, s{sW}, 7"); setm0(sT2, GW_L)
    e("s_mov_b64 exec, 0xff"); dma(("x",0), AK, sGW, "s3", sT2, GW_L); e("s_mov_b64 exec, -1")
    stamp("s1")
    e(f"s_and_b32 s{sROLE}, s{sH}, 3")
    e(f"s_lshr_b32 s3, s{sH}, 3"); e(f"s_mul_i32 s{sWGO}, s3, 7")
    e(f"s_bfe_u32 s{sCB}, s{sH}, 0x10002"); e(f"s_add_u32 s{sCA}, s{sCB}, s{sWGO}"); e(f"s_add_u32 s{sCA}, s{sCA}, 3")
    e(f"s_lshr_b32 s3, s{sH}, 2"); e(f"s_lshl3_add_u32 s3, s{sROLE}, s3")
    e(f"s_cmp_lt_u32 s{sROLE}, 3")
    e(f"s_cselect_b32 s{sCA}, s3, s{sCA}")
    e(f"s_cselect_b64 {sr(sWB2,2)}, {sr(sWG,2)}, {sr(sWU,2)}"); e(f"s_cselect_b64 {sr(sWA,2)}, {sr(sWA,2)}, {sr(sWG,2)}")
    e(f"s_cselect_b32 s{sSTR}, 6, 7"); e(f"s_lshl_b32 s{sWA+2}, s{sSTR}, 18"); e(f"s_mov_b32 s{sWA+3}, 0x20000")
    e(f"s_lshl_b32 s{sCA}, s{sCA}, 7"); e(f"s_lshl_b32 s3, s{sSTR}, 9"); e(f"s_lshl_b32 s{sSTR}, s{sSTR}, 13")
    e(f"v_mul_u32_u24 v{VWS}, s3, v{U1}"); e(f"v_lshrrev_b32 v{U0}, 2, v{AK}"); e(f"v_and_b32 v{U0}, 64, v{U0}")
    e(f"v_xor_b32 v{U0}, v{U0}, v{AK}"); e(f"v_and_b32 v{U0}, 0x70, v{U0}"); e(f"v_add_u32 v{VWS}, v{VWS}, v{U0}")
    e("s_lshl_b32 s3, s3, 3"); e("s_sub_u32 s3, s3, 1024"); e(f"v_add_u32 v{VWS+1}, s3, v{VWS}")
    e(f"s_lshl_b32 s{sW10}, s{sW}, 11"); e(f"s_lshl2_add_u32 s{sK0}, s{sROT}, s{sW}")
    def wq_dma(g):
        def a():
            if g == 3: k.require("bar14")
            if g: e(f"s_add_u32 s{sK0}, s{sK0}, 8")
            e(f"s_and_b32 s{sK0}, s{sK0}, 31"); e(f"s_mul_i32 s3, s{sK0}, s{sSTR}")
            setm0(sW10, 16384*(g%3))
            e(f"s_add_u32 s{sWQO}, s3, s{sCA}")
            dma(("wq",g), VWS, sWA, f"s{sWQO}", sW10, 16384*(g%3))
            dma(("wq",g), VWS+1, sWA, f"s{sWQO}", sW10, 16384*(g%3), imm=1024)
        return [a]
    for f_ in wq_dma(0): f_()
    stamp("s1")
    for s_, o_ in ((sWS,80),(sDBG,72),(sDBL,72),(sWO,16),(sWD,48),(sOUT,64)):
        e(f"s_load_dwordx2 {sr(s_,2)}, s[0:1], {o_}")
    X1 = x_dma(1)
    srd23(sWG, 512*1792*2); srd23(sWU, 512*1792*2); srd23(sWB2, 512*1792*2)
    e(f"v_lshrrev_b32 v{U0}, 2, v0"); e(f"v_mul_u32_u24 v{VWG}, 3584, v{U0}"); e(f"v_and_b32 v{U0}, 3, v0"); e(f"v_lshl_add_u32 v{VWG}, v{U0}, 4, v{VWG}")
    srd23(sWS, WS_SZ); srd23(sDBG, 256); srd23(sWO, 512*512*2); srd23(sWD, 1792*512*2); srd23(sOUT, 2048*512*2)
    e(f"s_mov_b32 s{sDBL+3}, 0x20000")
    for i in range(4): e(f"v_mov_b32 v{WB+i}, 0")
    e(f"v_lshlrev_b32 v{T1}, 10, v0")
    e(f"s_lshr_b32 s3, s2, 2"); e(f"s_or_b32 s3, s3, s{sW}"); e("s_cmp_eq_u32 s3, 0")
    e(f"s_cselect_b32 s{sDBL+2}, 256, 0")
    e("s_waitcnt lgkmcnt(0)")
    e("s_cbranch_scc0 L_nolead")
    e("s_lshl_b32 s3, s2, 16")
    e(f"buffer_store_dwordx4 {vr(WB,4)}, v{T1}, {sr(sWS,4)}, s3 offen sc1")
    k.raw("L_nolead:")
    e(f"s_add_u32 s{sT}, s{sROT}, s{sW}"); e(f"s_and_b32 s{sT}, s{sT}, 7"); e(f"s_mul_i32 s{sT}, s{sT}, {64*3584}")
    e(f"s_lshl_b32 s{sWGO}, s{sWGO}, 7"); e(f"s_lshl_b32 s3, s{sNT}, 5"); e(f"s_add_u32 s{sWMO}, s{sWGO}, s3")
    e(f"s_add_u32 s{sWMO}, s{sWMO}, s{sT}"); e(f"s_add_u32 s{sWMO}, s{sWMO}, 640")
    e(f"s_sub_u32 s3, s{sNT}, s{sCB}"); e(f"s_lshl1_add_u32 s{sCB}, s{sCB}, 6"); e(f"s_add_u32 s{sHL}, s{sCB}, 1")
    e(f"s_cmp_lt_u32 s{sROLE}, 3"); e(f"s_cselect_b32 s{sHL}, s3, s{sHL}"); e(f"s_cselect_b32 s3, s3, s{sCB}")
    e(f"s_lshl_b32 s{sCB}, s{sHL}, 6"); e(f"s_add_u32 s{sCB}, s{sCB}, s{sWGO}"); e("s_lshl_b32 s3, s3, 6"); e(f"s_add_u32 s{sWGO}, s{sWGO}, s3")
    e(f"s_lshl_b32 s3, s{sH}, 7"); e(f"s_lshl_b32 s{sFO}, s{sM}, 12"); e(f"s_add_u32 s{sFO}, s{sFO}, s3")
    e(f"s_add_u32 s{sWQ2}, s{sFO}, {WS_Z}"); e(f"s_and_b32 s{sFO}, s{sFO}, 0x3fc00")
    e(f"s_and_b32 s3, s3, 0xc00"); e(f"s_lshl_b32 s{sFK}, s{sW}, 12"); e(f"s_add_u32 s{sFK}, s{sFK}, s3")
    e(f"s_lshr_b32 s3, s{sM}, 1"); e(f"s_mul_i32 s{sHOS}, s3, {HO_T}"); e(f"s_and_b32 s3, s{sW}, 1"); e("s_lshl_b32 s3, s3, 10")
    e(f"s_add_u32 s{sHOS}, s{sHOS}, s3"); e(f"s_add_u32 s{sHOS}, s{sHOS}, {WS_HO}")
    e(f"s_lshr_b32 s3, s{sH}, 3"); e(f"s_mul_i32 s3, s3, {28*2048}"); e(f"s_add_u32 s{sHC}, s3, s{sHOS}")
    e(f"s_lshl_b32 s3, s{sH}, 11"); e(f"s_add_u32 s3, s3, s{sHOS}"); e(f"s_add_u32 s{sHOS}, s3, {112*2048}")
    X1[0]()
    e(f"v_and_b32 v{U0}, 31, v0"); e(f"v_lshlrev_b32 v{PR}, 7, v{U0}"); e(f"v_add_u32 v{PR}, s{sWB}, v{PR}")
    e(f"v_bfe_u32 v{U0}, v0, 1, 3"); e(f"v_lshrrev_b32 v{U1}, 5, v0"); e(f"v_xor_b32 v{U0}, v{U0}, v{U1}")
    for s_ in range(4):
        e(f"v_xor_b32 v{PW}, {2*s_}, v{U0}"); e(f"v_lshl_add_u32 v{XR+s_}, v{PW}, 4, v{PR}")
    e(f"s_lshl_b32 s{sT}, s{sH}, 17"); e(f"s_and_b32 s{sKVO}, s{sT}, 0x380000"); e(f"s_add_u32 s{sT}, s{sT}, {WS_KV}")
    e(f"s_lshl_b32 s3, s{sM}, 11"); e(f"s_add_u32 s{sKVO}, s{sKVO}, s3")
    e(f"s_add_u32 s{sQO}, s{sT}, s3"); e(f"s_add_u32 s{sQO}, s{sQO}, {WS_Q-WS_KV}")
    e(f"s_cmp_eq_u32 s{sROLE}, 0"); e(f"s_cselect_b32 s3, {WS_Q-WS_KV}, 0"); e(f"s_add_u32 s{sKVO}, s{sKVO}, s3"); e(f"s_add_u32 s{sKVO}, s{sKVO}, {WS_KV}")
    e(f"s_lshl_b32 s{sKVW}, s{sW}, 11"); e(f"s_add_u32 s{sKVW}, s{sKVW}, s{sT}")
    e(f"s_mul_i32 s{sLK}, s{sW}, {KVT}")
    X1[1]()
    e(f"v_bfe_u32 v{U0}, v0, 2, 2"); e(f"v_lshl_add_u32 v{U0}, v{U1}, 3, v{U0}")
    e(f"v_and_b32 v{PR}, 3, v0"); e(f"v_lshlrev_b32 v{PR}, 3, v{PR}")
    e(f"v_lshl_add_u32 v{VD0}, v{U0}, 5, v{PR}")
    e(f"v_lshl_add_u32 v{T0R}, v{U0}, 6, v{PR}"); e(f"v_and_b32 v{PW}, 16, v0"); e(f"v_lshl_add_u32 v{T0R}, v{PW}, 1, v{T0R}")
    e(f"s_lshl_b32 s3, s{sW}, 7"); e(f"s_add_u32 s3, s3, {GW_L}"); e(f"v_lshl_add_u32 v{GWR}, v{U1}, 4, s3")
    e(f"v_add_u32 v{AWA}, {RA}, v{T0R}"); e(f"v_add_u32 v{AWB}, {RA+4*WV}, v{T0R}")
    e(f"v_lshl_add_u32 v{T0R}, v{U0}, 7, v{PR}"); e(f"v_lshl_add_u32 v{T0R}, v{PW}, 1, v{T0R}")
    e(f"v_and_b32 v{TRB}, 8, v0"); e(f"v_lshl_add_u32 v{T0R}, v{TRB}, 3, v{T0R}"); e(f"v_xor_b32 v{TRB}, 64, v{T0R}")
    e(f"v_lshl_add_u32 v{VD0}, v{PW}, 7, v{VD0}"); e(f"v_add_u32 v{VD0}, {RA}, v{VD0}"); e(f"v_add_u32 v{VD1}, {4*WV}, v{VD0}")
    e(f"s_lshr_b32 s3, s{sW}, 1"); e("s_mul_i32 s3, s3, 28"); e(f"s_and_b32 s{sT}, s{sW}, 1"); e(f"s_add_u32 s3, s3, s{sT}")
    e(f"s_lshl_b32 s{sWDO}, s3, 14"); e(f"s_lshl_b32 s{sT}, s{sNT}, 7"); e(f"s_add_u32 s{sWDO}, s{sWDO}, s{sT}")
    e(f"s_mul_i32 s{sHOL}, s{sMT}, {HO_T}"); e(f"s_mul_i32 s3, s{sW}, {14*2048}"); e(f"s_add_u32 s{sHOL}, s{sHOL}, s3"); e(f"s_add_u32 s{sHOL}, s{sHOL}, {WS_HO}")
    X1[2]()
    e(f"v_and_b32 v{PR}, 15, v0"); e(f"v_lshl_add_u32 v{PR}, v{U1}, 5, v{PR}"); e(f"v_lshlrev_b32 v{PR}, 4, v{PR}")
    e(f"v_add_u32 v{AV0}, 1024, v{PR}"); e(f"v_add_u32 v{AV1}, 1280, v{PR}")
    e("s_mov_b32 exec_lo, 0xfffe0000"); e("s_mov_b32 exec_hi, 0xfffe0000")
    e(f"v_mov_b32 v{AV0}, 0x40000"); e(f"v_mov_b32 v{AV1}, 0x40000")
    e("s_mov_b32 exec_lo, 0x10000"); e("s_mov_b32 exec_hi, 0x10000")
    e(f"v_mov_b32 v{AV0}, 2048"); e(f"v_mov_b32 v{AV1}, 2048")
    e("s_mov_b64 exec, -1")
    e(f"s_lshl2_add_u32 s3, s{sW}, {PROG}"); e(f"v_mov_b32 v{PW}, s3")
    e(f"v_and_b32 v{U0}, 7, v0"); e(f"v_lshlrev_b32 v{PR}, 2, v{U0}"); e(f"v_add_u32 v{PR}, {PROG}, v{PR}")
    e(f"v_lshlrev_b32 v{VFL}, 15, v{U0}")
    e(f"v_lshrrev_b32 v{U0}, 1, v0"); e(f"v_mul_u32_u24 v{VWM}, 3584, v{U0}"); e(f"v_and_b32 v{U0}, 1, v0"); e(f"v_lshl_add_u32 v{VWM}, v{U0}, 4, v{VWM}")
    e(f"v_lshlrev_b32 v{U0}, 3, v0")
    k.lds("z", f"ds_write_b64 v{U0}, {vr(WB,2)} offset:{PROG}")
    X1[3]()
    stamp(); stamp("s1")

    WSLOT = dict(G=2,U=0,M=1)
    def w_dma(name, x):
        lb = WSLOT[name]*4096 + (1024*(x&2) if name == "M" else 0)
        def pre(): setm0(sWB, lb)
        def f():
            k.provide(f"Wi{name}{x}")
            if name == "M":
                pre()
                if x & 1: e(f"s_add_u32 s{sT}, s{sWMO}, {32*3584 - 1024}")
                dma(("W",name), VWM, sWG if x < 2 else sWU, f"s{sT if x&1 else sWMO}", sWB, lb, imm=1024*(x&1))
            else:
                e(f"s_add_u32 s{sK0}, s{sK0}, 8"); e(f"s_and_b32 s{sK0}, s{sK0}, 31"); e(f"s_mul_i32 s3, s{sK0}, {16*3584}")
                setm0(sWB, lb+1024*x)
                e(f"s_add_u32 s{sT}, s3, s{sWGO if name == 'G' else sCB}")
                dma(("W",name,x), VWG, sWB2 if name == "G" else sWU, f"s{sT}", sWB, lb+1024*x)
        f.pre = pre
        return f
    def touch(rs, n, mask=None, T0=T0):
        def f():
            lock("T0"); unlock("T0")
            e(f"v_lshlrev_b32 v{T0}, 3, v{AK}")
            e(f"s_lshl3_add_u32 s3, s2, s{sW}"); e(f"s_mul_i32 s3, s3, {n*128}")
            setm0(None, LDS_BYTES-256)
            for r_, m_ in zip(rs, mask or [(1<<n)-1]):
                e(f"s_mov_b64 exec, {m_}")
                k.vm("pf", f"buffer_load_dword v{T0}, {sr(r_,4)}, s3 offen lds")
            e("s_mov_b64 exec, -1")
        return f
    A0 = SA; A1 = GB; ZP = 126; OM = 126; Z = VF+4
    FS = lambda s_: SB + 8*(s_%2)
    NS = 32 + c["nu"]
    GD = c["gd"]; PG = c["pre_g"]; PU = c["pre_u"]
    def st_reads(s_, part):
        if s_ > 31: return
        g = s_//8; b = FS(s_); o = 16384*(g%3) + 2048*(s_%8); a = TRB if part else T0R
        k.lds(("f",part,s_), f"ds_read_b64_tr_b16 {vr(b+4*part,2)}, v{a} offset:{o}")
        k.lds(("f",part,s_), f"ds_read_b64_tr_b16 {vr(b+4*part+2,2)}, v{a} offset:{o+512}")
    dbg_txt = [f"v_lshrrev_b32 v{T1}, 2, v{AK}", f"buffer_load_dword v{T1}, v{T1}, {sr(sDBG,4)}, 0 offen sc1"]
    def masked(mask, tx):
        pre = [f"v_mov_b32 v{T1}, 0"] if "atomic" in tx[-1] else []
        return tx[:-1] + pre + [f"s_mov_b64 exec, {hex(mask)}", tx[-1], "s_mov_b64 exec, -1"]
    def poll_issue(tag, mask, tx):
        for t in masked(mask, tx):
            if t.startswith("buffer_"): k.vm(tag, t)
            else: e(t)
    def dbg_ld(): poll_issue("dbgld", 0xf, dbg_txt)
    def dbg_st():
        k.wait(vm=[("x",1)])
        e(f"v_mov_b32 v{T0}, 0x80"); e("s_lshl_b32 s3, s2, 2")
        k.vm("dbgst", f"buffer_store_dword v{T0}, off, {sr(sDBL,4)}, s3 sc1")
    def spin_global(name, mask, load):
        back = k.label(name+"_b"); slow = k.label(name+"_s")
        test = [f"v_cmp_gt_u32 vcc, 0x80, v{T1}", f"s_and_b32 s3, vcc_lo, {hex(mask)}"]
        for t in test: e(t)
        e(f"s_cbranch_scc1 {slow}")
        k.raw(back+":")
        k.ool.append("\n".join([slow+":", f"    s_mov_b32 s{sCNT}, {c['spin']}", slow+"_l:"] + ["    "+t for t in masked(mask, load)] + ["    s_waitcnt vmcnt(0)"]
            + ["    "+test[0], "    s_nop 1", "    "+test[1]]
            + [f"    s_cbranch_scc0 {back}", f"    s_sub_u32 s{sCNT}, s{sCNT}, 1", f"    s_cmp_lg_u32 s{sCNT}, 0", f"    s_cbranch_scc1 {slow}_l"]
            + [f"    s_branch {back}"]))
    def flag_store(stage):
        if stage > 1: k.require(f"flag{stage-1}")
        k.provide(f"flag{stage}")
        e("s_mov_b64 exec, 2")
        k.vm(("flag",stage), f"buffer_atomic_add v{AK}, off, {sr(sWS,4)}, s{sFO} offset:{4*(stage-1)} sc1")
        e("s_mov_b64 exec, -1")
    apoll = lambda so, stage: f"buffer_atomic_or v{T1}, v{VFL}, {sr(sWS,4)}, s{so} offen offset:{4*(stage-1)} sc0 sc1"
    def x_read(j, s_):
        if s_ == 0: k.wait(vm=[("x",j)])
        k.lds(("xr",4*j+s_), f"ds_read_b128 {ar(16*j+4*s_,4)}, v{XR+s_} offset:{(j%3)*4096}")
    names = ["G","U","M"]
    def wread(i):
        if i >= 96: return
        nm = names[i//32]; s_ = i % 32
        b = WB+4*(i%3)
        if nm == "M":
            k.require("all:fill_M")
            o = ((s_>>2)&3)*WV + WSLOT[nm]*4096 + (s_&3)*512; a = VD0 if s_ < 16 else VD1; d_ = 128
        else:
            k.require(f"all:fill_{nm}{s_>>4}")
            o = (s_&3)*WV + WSLOT[nm]*4096 + (s_>>3)*1024; a = AWB if s_ & 4 else AWA; d_ = 256
        k.lds(("w",i), f"ds_read_b64_tr_b16 {vr(b,2)}, v{a} offset:{o}")
        k.lds(("w",i), f"ds_read_b64_tr_b16 {vr(b+2,2)}, v{a} offset:{o+d_}")
        k.provide(f"wrd{i}")
        if s_ == 31: k.provide("done_"+nm)
    def w_bar(nm, hf):
        k.require(f"Wi{nm}{2*hf}", f"Wi{nm}{2*hf+1}"); stamp("win")
        k.wait(vm=[("W",nm,2*hf+1)]); e("s_barrier"); k.provide(f"all:fill_{nm}{hf}"); stamp("win")
    def half_sum(e_, z):
        e_(f"v_mov_b32 v{z+1}, v{z}"); e_(f"v_permlane32_swap_b32 v{z}, v{z+1}"); e_(f"v_add_f32 v{z}, v{z}, v{z+1}")
    def sig_seq(regs, scaled=True, mul=True):
        out = []
        for p in range(0, len(regs), 4):
            q_ = regs[p:p+4]
            out += [f"v_mul_f32 v{a}, {hex(f2u(-LOG2E))}, v{a}" for a in q_ if mul] + [f"v_exp_f32 v{a}, v{a}" for a in q_]
            out += [(f"v_fma_f32 v{a}, v{a}, v{VC}, v{VC}" if scaled else f"v_add_f32 v{a}, 1.0, v{a}") for a in q_] + [f"v_rcp_f32 v{a}, v{a}" for a in q_]
        return out
    assert c["rot"] == "h2r"
    for s_ in range(4): x_read(0,s_)
    for s_ in range(4): k.lds("gw", f"ds_read_b128 {vr(GA+4*s_,4)}, v{GWR} offset:{32*s_}")
    k.wait(vm=[("wq",0)], lds=["z"])
    e("s_barrier")
    stamp("s1")
    st_reads(0,0); st_reads(0,1)
    k.wait(lds=["gw"])
    st_reads(1,0); st_reads(1,1)
    for s_ in range(4):
        for i in range(4): e(f"v_dot2_f32_bf16 v{WB+i}, {ar(4*s_+i)}, v{GA+4*s_+i}, {'0' if s_==0 else vr(WB+i)}")
    def save(): return (list(k.lq), list(k.vq), set(k.have), m0[0], set(locks), nst[0], npt[0])
    def restore(st_):
        k.lq, k.vq, k.have = list(st_[0]), list(st_[1]), set(st_[2]); m0[0] = st_[3]; locks.clear(); locks.update(st_[4]); nst[0] = st_[5]; npt[0] = st_[6]
    var_text = []
    def variant(label, st_, ctx, fn):
        cur = save(); main = k.ins
        restore(st_); k.ins = list(ctx); n0 = len(k.ins)
        fn(); e("s_branch L_join")
        end = save()
        assert [t for t,_ in end[0]] == [t for t,_ in cur[0]] and [t for t,_ in end[1]] == [t for t,_ in cur[1]] and end[3] == cur[3], (label, end[1], cur[1])
        var_text.append(label + ":\n" + "\n".join((i.text if i.label else "    "+i.text.replace("; STAMP","")) for i in k.ins[n0:]))
        k.ins = main; restore(cur)
    def startup(swapped):
        DQ = {0: wq_dma(1) + x_dma(2), 1: [dbg_st] + x_dma(3), 2: wq_dma(2) + x_dma(4), 3: x_dma(5), 4: wq_dma(3) + x_dma(6), 5: x_dma(7),
              6: [w_dma("G",x) for x in range(4)], 7: [dbg_ld] + [w_dma("U",x) for x in range(4) if c["k_u"][x] < 0]}
        SM = dict(zip([2,4,6,8, 10,12,14,16, 17,19,20,22], [(sWG,x) for x in range(4)] + [(sWU,x) for x in range(4)] + [(sWG,5),(sWG,6),(sWU,5),(sWU,6)]))
        def mm(acc, wf, xa, cin):
            a_, b_ = (ar(xa,4), vr(wf,4)) if swapped else (vr(wf,4), ar(xa,4))
            e(f"v_mfma_f32_32x32x16_bf16 {vr(acc,16)}, {a_}, {b_}, {cin or vr(acc,16)}")
        for j in range(8):
            dq = DQ[j]
            stamp("qkv")
            for s_ in range(4*j, 4*j+4):
                n_ = -(-len(dq)//(4*j+4-s_))
                b = FS(s_); xa = 4*s_
                z0 = "0" if s_ == 0 else None
                k.wait(lds=[("f",0,s_),("xr",s_)])
                mm(A0, b, xa, z0)
                if s_ % 8 == 6 and s_ < 30:
                    k.wait(vm=[("wq",(s_+2)//8)])
                    e("s_barrier"); k.provide(f"bar{s_}")
                if s_ == 30 and not PG: w_bar("G", 0)
                if 4 <= s_+2 < 32: x_read((s_+2)//4, (s_+2)%4)
                st_reads(s_+2, 0)
                if s_ == 31 and GD >= 2 and not PG: wread(GD-2)
                if n_ >= 2: dq.pop(0)()
                if s_ == 1:
                    e(f"v_add_f32 v{WB}, v{WB}, v{WB+1}"); e(f"v_add_f32 v{WB+2}, v{WB+2}, v{WB+3}"); e(f"v_add_f32 v{ZP}, v{WB}, v{WB+2}"); half_sum(e, ZP)
                k.wait(lds=[("f",1,s_)])
                mm(A1, b+4, xa, z0)
                st_reads(s_+2, 1)
                if s_ == 30 and GD >= 3 and not PG: wread(0)
                if s_ == 31 and not PG: wread(GD-1)
                if n_ >= 1: dq.pop(0)()
            assert not dq
        stamp(); stamp("qkv"); stamp("s1"); stamp("pub")
    KVM = [1, 1, 0xff]
    def kv_poll_txt(ch):
        if ch == 2: return [apoll(sFK, 1)]
        if ch == 0: return [apoll(sFO, 1)]
        return [f"s_add_u32 s{sT2}, s{sFO}, 0x8000", f"s_and_b32 s{sT2}, s{sT2}, 0x3ffff", apoll(sT2, 1)]
    def kv_poll(ch):
        lock("T1"); k.require("init")
        poll_issue(("kp",ch), KVM[ch], kv_poll_txt(ch))
    def kv_pick(ch):
        unlock("T1")
        k.wait(vm=[("kp",ch)])
        spin_global(f"kp{ch}", KVM[ch], kv_poll_txt(ch))
        k.provide(f"kvflag{ch}")
    def kv_dma(ch, q):
        def f():
            k.require(f"kvflag{min(ch,2)}", "all:fill_G1")
            if ch >= 3: k.require(f"all:done_KV{ch-3}")
            k.provide(f"kvi{ch}_{q}")
            if q == 0:
                setm0(sLK, (ch%3)*KVS)
                e(f"s_add_u32 s{sT2}, s{sR}, {ch}"); e(f"s_and_b32 s{sT2}, s{sT2}, 7"); e(f"s_lshl_b32 s{sT2}, s{sT2}, 14"); e(f"s_add_u32 s{sKVO}, s{sT2}, s{sKVW}")
            dma(("kvd",ch), AK, sWS, f"s{sKVO}", sLK, (ch%3)*KVS, imm=1024*q, sc1=True)
        if q: f.pre = lambda: setm0(sLK, (ch%3)*KVS)
        return f
    kvo = lambda t: ((t>>3)%3)*KVS + (t&7)*KVT
    def rK(t):
        if t > 63: return
        k.require(f"all:fill_KV{t>>3}"); k.provide(f"krd{t}")
        k.lds(("k",t), f"ds_read_b128 {vr(KF,4)}, v{AK} offset:{kvo(t)}")
    def rV(t, f):
        if t > 63: return
        k.require(f"all:fill_KV{t>>3}")
        k.lds(("v",f,t), f"ds_read_b128 {vr(VF+4*f,4)}, v{AV1 if f else AV0} offset:{kvo(t)}")
        if f == 1 and t % 8 == 7: k.provide(f"done_KV{t>>3}")
    Sb = lambda t: SB if t % 2 == 0 else SA
    def QK(t):
        k.require(f"krd{t}"); k.wait(lds=[("k",t)])
        e(f"v_mfma_f32_32x32x16_bf16 {vr(Sb(t),16)}, {vr(KF,4)}, {vr(Q,4)}, 0")
    def PV(t, f):
        k.wait(lds=[("v",f,t)])
        e(f"v_smfmac_f32_32x32x32_bf16 {vr(O,16)}, {vr(VF+4*f,4)}, {vr(Sb(t)+8*f,8)}, v{IDX}")
    ON = SB; PA = SB+4; ZR = SB+8
    def common_ops():
        GQ = {}
        def gq(s_, f): GQ.setdefault(s_, []).append(f)
        def init_chk():
            k.wait(vm=["dbgld"]); spin_global("init", 0xf, dbg_txt); k.provide("init")
        gq(min(16-GD, c["k_flag"]), init_chk)
        def pads():
            k.require("all:fill_G1")
            e(f"v_mov_b32 v{PA}, s{sLK}")
            for i in range(4): e(f"v_mov_b32 v{ON+i}, 0x3f803f80")
            e("s_mov_b64 exec, 1")
            for x in range(3): k.lds("pad", f"ds_write_b128 v{PA}, {vr(ON,4)} offset:{x*KVS+2048}")
            e("s_mov_b64 exec, -1")
        gq(24, pads)
        def zst():
            e(f"v_lshrrev_b32 v{T0}, 2, v{AK}")
            e("s_mov_b32 exec_hi, 0")
            k.vm("st", f"buffer_store_dword v{ZP}, v{T0}, {sr(sWS,4)}, s{sWQ2} offen sc1")
            e("s_mov_b32 exec_hi, -1")
            e(f"s_and_b32 s{sWQ2}, s{sWQ2}, 0xfffffc00"); k.provide("zst")
        gq(c["k_zs"], zst)
        for x in range(4):
            if 0 <= c["k_u"][x] < 64: gq(c["k_u"][x], w_dma("U",x))
        def pub1(): k.require("zst", "init", "st3"); stamp("win"); stamp("pub"); k.wait(vm=["st"]); stamp("pub"); flag_store(1)
        gq(c["k_flag"], pub1)
        gq(c["k_poll"], lambda: kv_poll(0))
        kc = c["k_chk"]
        def first_kv(): stamp("win"); stamp("pub"); kv_pick(0); stamp("win"); stamp("pub"); kv_dma(0,0)()
        gq(kc, first_kv)
        gq(kc+1, lambda: k.vm("q", f"buffer_load_dwordx4 {vr(Q,4)}, v{AK}, {sr(sWS,4)}, s{sQO} offen sc1"))
        gq(kc+2, kv_dma(0,1))
        for x in range(4): gq(kc+3+x//2, lambda x=x: k.vm("zp", f"buffer_load_dword v{Z+x}, v{T0}, {sr(sWS,4)}, s{sWQ2} offen offset:{256*x} sc1"))
        gq(kc+5, lambda: kv_poll(1))
        for x, s_ in enumerate(c["k_m"]): gq(s_, w_dma("M",x))
        def bar_b():
            k.require("kvi0_1"); stamp("win"); k.wait(vm=["q", ("kvd",0), "zp"], lds=["pad"]); e("s_barrier"); stamp("win")
            k.provide("all:fill_KV0", "all:done_G", "zready"); rK(0); rV(0,0)
        gq(c["k_b"], bar_b)
        if "m" in c["vtouch"]: gq(c["vtouch"]["m"], touch([sWU,sWG], 7, [0x60,0x60], VC))
        if "u" in c["vtouch"]: gq(c["vtouch"]["u"], touch([sWU], 7, [0x07], VC))
        if "um" in c["vtouch"]: gq(c["vtouch"]["um"], touch([sWU,sWG], 7, [0x67,0x60], VC))
        def qk0(): QK(0); rK(1)
        gq(62 if NS == 64 else max(60, c["k_b"]+1), qk0)
        return GQ
    def role_ops(role):
        RQ = {}
        ks = c["k_st"]
        zo = [f"v_mov_b32 v{O+i}, 0" for i in range(16)] + [f"v_mov_b32 v{IDX}, 0xdddddddd"]
        RQ["end"] = zo + [f"v_mul_f32 v{GA+i}, {hex(f2u(-LOG2E))}, v{GA+i}" for i in range(16)]
        if role == 3:
            seq = sig_seq(list(range(A0,A0+16)), scaled=False)
            RQ["end"] = zo + [f"v_pk_mul_f32 {vr(A0+2*i,2)}, {vr(A0+2*i,2)}, {vr(GA+2*i,2)}" for i in range(8)] + [f"v_mul_f32 v{GA+i}, {hex(f2u(-LOG2E))}, v{A1+i}" for i in range(16)]
            if PG: RQ["pre"] = seq[:c["pre3"]]; seq = seq[c["pre3"]:]
            for n, t_ in enumerate(seq): RQ.setdefault(1 + n*(KE-2)//len(seq), []).append(t_)
            RQ.setdefault(ks[3], []).append(lambda: k.provide("st3"))
            return RQ
        k00 = "pre" if PG else 0
        if role == 0: RQ.setdefault(k00, []).extend([f"s_mov_b32 s98, {hex(f2u(0.25*LOG2E))}", "s_mov_b32 s99, s98", f"v_mov_b32 v{U0}, s98"])
        if role == 2: RQ.setdefault(k00, []).extend([f"v_and_b32 v{U0}, 0x2f0, v{AK}", f"v_bfe_u32 v{U1}, v{AK}, 8, 1", f"v_lshl_add_u32 v{U0}, v{U1}, 17, v{U0}"])
        for p in range(4):
            a_ = (A0 if p < 2 else A1) + 8*(p&1)
            seq = []
            if role == 0: seq += [f"v_pk_mul_f32 {vr(a_+2*i,2)}, {vr(a_+2*i,2)}, {vr(U0,2)} op_sel_hi:[1,0]" for i in range(4)]
            seq += [f"v_cvt_pk_bf16_f32 v{a_+i}, v{a_+2*i}, v{a_+2*i+1}" for i in range(4)]
            if role == 2: seq += [f"v_permlane32_swap_b32 v{a_}, v{a_+2}", f"v_permlane32_swap_b32 v{a_+1}, v{a_+3}"]
            k0 = max(0, ks[p]-3) if p <= PG else max(ks[p-1], ks[p]-4)
            if p < PG: RQ.setdefault("pre", []).extend(seq)
            else:
                for n, t_ in enumerate(seq): RQ.setdefault(k0 + n*(ks[p]-k0)//len(seq), []).append(t_)
            def st(p=p, a_=a_):
                if role == 2:
                    k.vm("st", f"buffer_store_dwordx4 {vr(a_,4)}, v{U0}, {sr(sWS,4)}, s{sKVO} offen offset:{1024+256*(p&1)} sc1")
                    if p == 1: e(f"s_add_u32 s{sKVO}, s{sKVO}, {2*131072}")
                else:
                    k.vm("st", f"buffer_store_dwordx4 {vr(a_,4)}, v{AK}, {sr(sWS,4)}, s{sKVO} offen sc1")
                    if p < 3: e(f"s_add_u32 s{sKVO}, s{sKVO}, 131072")
                k.provide(f"st{p}")
            RQ.setdefault("pre" if p < PG else ("m", ks[p]), []).append(st)
        return RQ
    KE = 32
    def gu_steps(s0, s1, RQ):
        GQ = common_ops()
        def run_(l):
            for t_ in l:
                if callable(t_): t_()
                else: e(t_)
        if s0 == 0 and PG:
            run_(RQ.get("pre", []))
            if c["k_zs"] <= 0: run_(GQ.pop(c["k_zs"], []))
            w_bar("G", 0)
            for i in range(GD): wread(i)
        for s_ in range(s0, s1):
            if s_ == 32:
                run_(RQ["preu"])
                if NS > 32:
                    w_bar("U", 0)
                    for i in range(GD): wread(32+i)
                run_(RQ["postu"])
            acc = GA if s_ < 32 else GB
            if s_ in c.get("gst",[]): stamp("gst")
            if c.get("gprio") and s_ % 4 == 0: e(f"s_setprio {3-(s_%16)//4}")
            if s_ < NS:
                k.wait(lds=[("w",s_)])
                e(f"v_mfma_f32_32x32x16_bf16 {vr(acc,16)}, {vr(WB+4*(s_%3),4)}, {ar(4*(s_%32),4)}, {'0' if s_%32==0 else vr(acc,16)}")
            hold = s_ < 32 <= s_+GD
            if (s_+GD) % 16 == 0 and s_+GD < NS and not hold: w_bar(names[(s_+GD)//32], ((s_+GD)//16)&1)
            if s_+GD < NS and not hold: wread(s_+GD)
            for f_ in RQ.get(("m",s_), []): f_()
            for f_ in GQ.get(s_, []): f_()
            for t_ in RQ.get(s_, []):
                if callable(t_): t_()
                else: e(t_)
            if s_ == 31: stamp()
        if s1 == KE: run_(RQ["end"]); k.wait(vm=["st"])
    e(f"s_cmp_eq_u32 s{sROLE}, 2"); e("s_cbranch_scc1 L_r2")
    st0 = save(); ctx0 = k.ins[-16:]
    startup(False)
    e(f"s_cmp_eq_u32 s{sROLE}, 0"); e("s_cbranch_scc1 L_r0")
    st1 = save(); ctx1 = k.ins[-16:]
    e(f"s_cmp_eq_u32 s{sROLE}, 3"); e("s_cbranch_scc1 L_r3")
    gu_steps(0, KE, role_ops(1))
    variant("L_r0", st1, ctx1, lambda: gu_steps(0, KE, role_ops(0)))
    variant("L_r3", st1, ctx1, lambda: gu_steps(0, KE, role_ops(3)))
    def v_path(): startup(True); gu_steps(0, KE, role_ops(2))
    variant("L_r2", st0, ctx0, v_path)
    k.raw("L_join:")
    RQ = {}
    kz = c["k_b"]
    sg = sig_seq(list(range(GA,GA+16)), scaled=False, mul=False)
    RQ["preu"] = sg[:PU]; RQ["postu"] = sg[PU:PU+c["post_u"]]; sg = sg[PU+c["post_u"]:]
    for n, t_ in enumerate(sg): RQ.setdefault(32 + n*(kz-32)//len(sg), []).append(t_)
    seq = [lambda: k.require("zready"), f"v_add_f32 v{Z}, v{Z}, v{Z+1}", f"v_add_f32 v{Z+2}, v{Z+2}, v{Z+3}", f"v_add_f32 v{Z}, v{Z}, v{Z+2}"]
    half_sum(seq.append, Z)
    seq += [f"v_mul_f32 v{Z}, {hex(f2u(LOG2E))}, v{Z}", f"v_exp_f32 v{VC}, v{Z}", f"v_exp_f32 v{VG}, -v{Z}", f"v_add_f32 v{VC}, 1.0, v{VC}", f"v_add_f32 v{VG}, 1.0, v{VG}",
            f"v_rcp_f32 v{OM}, v{VC}", f"v_rcp_f32 v{VG}, v{VG}", f"v_min_f32 v{VC}, {hex(f2u(2.0**100))}, v{VC}"]
    seq += [f"v_pk_mul_f32 {vr(GA+2*i,2)}, {vr(GA+2*i,2)}, {vr(OM,2)} op_sel_hi:[1,0]" for i in range(8)]
    for n, t_ in enumerate(seq): RQ.setdefault(kz + n*(64-kz)//len(seq), []).append(t_)
    gu_steps(KE, 64, RQ)
    e(f"s_cmp_eq_u32 s{sROLE}, 3"); e("s_cbranch_scc1 L_fepi2")
    k.raw("L_join2:")
    kv_ = K(); kv_.verify = False; ev = kv_.e
    kv_.raw("L_fepi2:")
    ev(f"s_sub_u32 s3, s{sHL}, 1"); ev("s_lshl_b32 s3, s3, 11"); ev(f"s_add_u32 s3, s3, s{sHC}"); ev(f"s_add_u32 s{sT}, s3, {14*2048}")
    for i in range(8): ev(f"v_pk_mul_f32 {vr(A0+2*i,2)}, {vr(A0+2*i,2)}, {vr(OM,2)} op_sel_hi:[1,0]")
    for i in range(8): ev(f"v_cvt_pk_bf16_f32 v{A0+i}, v{A0+2*i}, v{A0+2*i+1}")
    ev(f"buffer_store_dwordx4 {vr(A0,4)}, v{AK}, {sr(sWS,4)}, s3 offen sc1")
    ev(f"buffer_store_dwordx4 {vr(A0+4,4)}, v{AK}, {sr(sWS,4)}, s{sT} offen sc1")
    ev("s_branch L_join2")
    e(f"s_lshl_b32 s3, s{sHL}, 11"); e(f"s_add_u32 s{sXO}, s3, s{sHC}"); e(f"s_add_u32 s{sWQ2}, s{sXO}, {14*2048}")
    stamp()

    side = []
    vside = []
    now = [0.0]
    def at(t, fn): side.append([t, fn]); side.sort(key=lambda x: x[0])
    def product(t0, span):
        seq = [f"v_pk_mul_f32 {vr(GB+2*i,2)}, {vr(GA+2*i,2)}, {vr(GB+2*i,2)}" for i in range(8)] + [f"v_cvt_pk_bf16_f32 v{GB+i}, v{GB+2*i}, v{GB+2*i+1}" for i in range(8)]
        for n, t_ in enumerate(seq):
            def f(t_=t_, n=n):
                e(t_)
                if n == 7: k.provide("prodA")
                if n == 15: k.provide("prod")
            vside.append((t0 + span*n/16, f))
    if NS == 64: product(0.5, 1.0)
    def second_kv(): kv_pick(1); kv_dma(1,0)()
    at(0.0, second_kv); at(0.2, kv_dma(1,1))
    def gu_op(i):
        def f():
            nm = names[i//32]; s_ = i % 32
            acc = GA if nm == "M" else GB
            if nm == "M": k.require("prodA")
            k.require(f"wrd{i}"); k.wait(lds=[("w",i)])
            e(f"v_mfma_f32_32x32x16_bf16 {vr(acc,16)}, {vr(WB+4*(i%NWB),4)}, {ar(4*s_,4)}, {'0' if s_==0 else vr(acc,16)}")
            if nm == "M": k.provide(f"xdead{s_}")
            wread(i+NWB)
            if s_ == 31:
                if nm == "M": mixed(now[0]+0.7)
                else: product(now[0]+0.7, 0.6)
        return f
    def mixed(t0):
        seq = sig_seq(list(range(GA,GA+8)))
        seq += [f"v_pk_mul_f32 {vr(GA+2*i,2)}, {vr(GA+2*i,2)}, {vr(GA+8+2*i,2)}" for i in range(4)]
        seq += [f"v_cvt_pk_bf16_f32 v{GA+i}, v{GA+2*i}, v{GA+2*i+1}" for i in range(4)]
        for n, txt in enumerate(seq):
            def f(txt=txt, last=(n == len(seq)-1)):
                e(txt)
                if last:
                    def st():
                        e(f"s_and_b32 s3, s{sNT}, 1"); e("s_mul_i32 s3, s3, 14"); e(f"s_lshr_b32 s{sT}, s{sNT}, 1"); e(f"s_add_u32 s3, s3, s{sT}"); e("s_add_u32 s3, s3, 10")
                        e("s_lshl_b32 s3, s3, 11"); e(f"s_add_u32 s{sXO}, s3, s{sHC}")
                        k.vm(("h",1), f"buffer_store_dwordx4 {vr(GA,4)}, v{AK}, {sr(sWS,4)}, s{sXO} offen sc1")
                        k.provide("hst1")
                    def fl():
                        k.require("hst1", "poisoned"); k.wait(vm=[("h",1)]); flag_store(3)
                    at(now[0], st); at(now[0]+3.0, fl)
            vside.append((t0 + c.get("mspan",3.0)*n/len(seq), f))
    pos = {i: i % 4 for i in range(14)}
    nxt = [4, 5] + [(14-ND-2+x) % 4 for x in range(2)] if ND else None
    if ND:
        assert ND == 2
        pos[14], pos[15], pos[16], pos[17] = 4, 5, (10 % 4), (11 % 4)
        prev = {14: None, 15: None, 16: 10, 17: 11}
    else:
        for i in range(14,18): pos[i] = i % 4
        prev = {i: i-4 for i in range(14,18)}
    for i in range(14): prev[i] = i-4 if i >= 4 else None
    pbyte = lambda i: ((pos[i]+4) % 6)*2048
    def wd_dma(i, q):
        def pre(): setm0(sWB, pbyte(i))
        def f():
            k.require(["all:done_G","all:done_U","all:done_M"][pos[i]//2], "vwg")
            if prev[i] is not None: k.require(f"dw_used{prev[i]}")
            if q == 0 and i > 0: k.require(f"wdi{i-1}_1")
            k.provide(f"wdi{i}_{q}")
            dma(("wd",i), VWG2 if q else VWG, sWD if i < 14 else sWO, f"s{sWDO}", sWB, pbyte(i), imm=1024*q)
            if q == 1:
                if i == 13:
                    e(f"s_lshl_b32 s{sWDO}, s{sW}, 16"); e(f"s_lshl_b32 s3, s{sNT}, 7"); e(f"s_add_u32 s{sWDO}, s{sWDO}, s3")
                elif i < 17: e(f"s_add_u32 s{sWDO}, s{sWDO}, {32768 if i < 14 else 16384}")
        f.pre = pre
        return f
    def h_load(i, mi):
        def f():
            k.require("hflag2" if i < 10 else "hflag3", f"xdead{2*(i%4)+mi}")
            if i >= 4: k.require(f"dstep{i-4}")
            if mi == 0 and i > 0: k.require(f"hli{i-1}_1")
            k.provide(f"hli{i}_{mi}")
            k.vm(("hl",i), f"buffer_load_dwordx4 {ar(8*(i%4)+4*mi,4)}, v{AK}, {sr(sWS,4)}, s{sHOL} offen offset:{(i&1)*2048+mi*1024} sc1")
            if mi == 1 and (i & 1): e(f"s_add_u32 s{sHOL}, s{sHOL}, 4096")
        return f
    def d_read(i, j, dst=None):
        ni, q = j>>1, j&1
        k.require("xdead11", "vwd")
        if j == 0: k.wait(vm=[("wd",i)])
        d = dst if dst else ar(32+8*(i%2)+4*ni+2*q, 2)
        k.require(f"wdi{i}_1"); k.provide(f"drd{i}_{j}")
        k.lds(("dw",i,ni), f"ds_read_b64_tr_b16 {d}, v{AWB if ni else AWA} offset:{pbyte(i)+q*1024}")
    wq_ = {i: [i+4] for i in range(14)} if not ND else {**{i: [i+4] for i in range(10)}, 10: [14,16], 11: [15,17], 12: [], 13: []}
    if ND: wq_[9] = [13,14]; wq_[10] = [15,16]; wq_[11] = [17]
    def d_op(i, j):
        ops = []
        hd = c["hd"]
        def f():
            ni, mi = j>>1, j&1
            k.require("xdead31", f"drd{i}_3", f"hli{i}_1")
            k.wait(lds=[("dw",i,ni)], vm=([("hl",i)] + ([("wd",i+1)] if i < 13 else [])) if j == 0 else [])
            acc = ar(64+16*(2*mi+ni),16)
            e(f"v_mfma_f32_32x32x16_bf16 {acc}, {ar(8*(i%4)+4*mi,4)}, {ar(32+8*(i%2)+4*ni,4)}, {'0' if i==0 else acc}")
            if i < 13: d_read(i+1, j)
            if j == 2: k.provide(f"dw_used{i}")
            if j == 3: k.provide(f"dstep{i}")
            if j < 2 and i+hd < 14: h_load(i+hd, j)()
            if j >= 2 and wq_[i]: wd_dma(wq_[i][0], j-2)()
            if j == 3:
                for x in wq_[i][1:]:
                    at(now[0]+0.05, wd_dma(x,0)); at(now[0]+0.06, wd_dma(x,1))
        if j == 2 and wq_[i]: f.pre = wd_dma(wq_[i][0], 0).pre
        return f
    gops = [gu_op(i) for i in range(NS,96)] + [d_op(i,j) for i in range(14-ND) for j in range(4)]
    seg = c["seg"]
    def spread(n, T): return [ (n*(x+1))//T - (n*x)//T for x in range(T) ]
    if NS == 64:
        ng = [0]*seg[0] + spread(32,seg[1]); tM = seg[0]
    else:
        tU = c["segu"][0]; tM = tU + c["segu"][1] + 1
        ng = [0]*tU + spread(64-NS, c["segu"][1]) + [0] + spread(32,seg[1])
    GT = tM+seg[1]; NGU = 96-NS
    ng += spread(56-4*ND, 64-GT)
    assert sum(ng) == len(gops) and max(ng) <= 4, ng
    nep = [0]; curprio = [0]
    def epoch(ts, tc, pre=None, post=None):
        row = nep[0]; nep[0] += 1; assert row < 16
        snap = set()
        def sig():
            if pre: pre()
            snap.update(x for x in k.have if x.startswith(("fill_","done_")))
            k.lds(("sig",row), f"ds_write_b32 v{PW}, v{PW} offset:{32*row}")
        def rd(): lock("T0"); k.lds(("chk",row), f"ds_read_b32 v{T0}, v{PR} offset:{32*row}")
        def chk():
            unlock("T0")
            k.wait(lds=[("chk",row)])
            back = k.label("ep_b"); slow = k.label("ep_s")
            e(f"v_cmp_eq_u32 vcc, 0, v{T0}"); e(f"s_cbranch_vccnz {slow}"); k.raw(back+":")
            k.ool.append("\n".join([slow+":", f"    s_mov_b32 s{sCNT}, {c['spin']*16}", "    s_setprio 0", slow+"_l:",
                f"    ds_read_b32 v{T0}, v{PR} offset:{32*row}", "    s_waitcnt lgkmcnt(0)", f"    v_cmp_eq_u32 vcc, 0, v{T0}", "    s_nop 1",
                f"    s_cbranch_vccz {slow}_x", f"    s_sub_u32 s{sCNT}, s{sCNT}, 1", f"    s_cmp_lg_u32 s{sCNT}, 0", f"    s_cbranch_scc1 {slow}_l",
                slow+"_x:", f"    s_setprio {curprio[0]}", f"    s_branch {back}"]))
            k.provide(*("all:"+x for x in snap))
            if post: post()
        at(ts, sig); at(tc-0.3, rd); at(tc, chk)
    def kv_fetch(ch, tpoll, tdma):
        if ch <= 2:
            at(tpoll, lambda: kv_poll(ch)); at(tdma-0.01, lambda: kv_pick(ch))
        at(tdma, kv_dma(ch,0)); at(tdma+0.2, kv_dma(ch,1))
    def kv_landed(ch):
        def f(): k.require(f"kvi{ch}_1"); k.wait(vm=[("kvd",ch)]); k.provide(f"fill_KV{ch}")
        return f
    def h_flag(stage, tpoll, tchk):
        def poll():
            lock("T1"); k.require("vwg")
            poll_issue(("hp",stage), 3, [apoll(sFK, stage)])
        def chk():
            unlock("T1")
            k.wait(vm=[("hp",stage)])
            spin_global(f"hp{stage}", 3, [apoll(sFK, stage)])
            k.provide(f"hflag{stage}")
        if tpoll is None: poll(); chk()
        else: at(tpoll, poll); at(tchk, chk)
    nm_ = len(c.get("k_m", []))
    for x in range(nm_, 4): at(c.get("t_m",1.2)+c.get("t_ms",0.6)*(x-nm_), w_dma("M",x))
    def hst(j):
        def f():
            k.require("prod")
            k.vm(("h",0), f"buffer_store_dwordx4 {vr(GB+4*j,4)}, v{AK}, {sr(sWS,4)}, s{sWQ2 if j else sXO} offen sc1"); k.provide(f"hst0{j}")
        return f
    th = c["t_h"] if NS == 64 else tM + c["dh"]
    def poison():
        k.require("prod"); k.provide("poisoned")
        for i in range(4): e(f"v_mov_b32 v{GB+8+i}, -1")
        k.vm(("h",1), f"buffer_store_dwordx4 {vr(GB+8,4)}, v{AK}, {sr(sWS,4)}, s{sHOS} offen sc1")
    if c["poison"]:
        at(c["t_po"] if NS == 64 else th+4.2, poison)
        if c["e_lead"] > 1: at(64-c["e_lead"]/2, lambda: flag_store(4))
    else: k.provide("poisoned")
    at(th, hst(0)); at(th+c.get("t_hs",0.01), hst(1))
    def fl2(): k.require("hst01"); k.wait(vm=[("h",0)]); flag_store(2)
    at(th+3.4, fl2)
    t1st = tM if NS == 64 else tU
    def m_landed():
        if tM <= 6: kv_landed(1)()
        k.require("WiM3"); k.wait(vm=[("W","M")]); k.provide("fill_M")
    def first_reads():
        for i in range(NWB): wread(NS+i)
    if t1st > 6: epoch(2.5, 5.5, kv_landed(1))
    if NS == 64: epoch(tM-c["t_me"], tM-0.2, m_landed, first_reads)
    else:
        for x in range(4):
            if c["k_u"][x] >= 64: at((c["k_u"][x]-64)/4, w_dma("U",x))
        def u_landed():
            if tU <= 6: kv_landed(1)()
            k.require("WiU3"); k.wait(vm=[("W","U",3)]); k.provide("fill_U0", "fill_U1")
        epoch(tU-c["t_ue"], tU-0.2, u_landed, first_reads)
        epoch(tM-3.0-c["t_me"], tM-3.0, m_landed)
    kv_fetch(2, c.get("t_p2",3.7), c.get("t_d2",6.2))
    epoch(max(9.5,c["t_d2"]+2.2), 12.5, kv_landed(2))
    kv_fetch(3, 10.6, 12.8)
    if c["pf"]: at(c.get("t_pf",7.0), touch([sWD], 7)); at(c.get("t_pf",7.0)+0.3, touch([sWO], 2))
    epoch(17.5, 21.0, kv_landed(3))
    kv_fetch(4, 0, 21.2)
    def vwg():
        k.require("WiU3", "kvflag2"); lock("T0"); unlock("T0")
        e(f"v_bfe_u32 v{T0}, v{AK}, 8, 1"); e(f"v_lshlrev_b32 v{T0}, 6, v{T0}")
        e(f"v_and_b32 v{VFL}, 0x70, v{AK}"); e(f"v_xor_b32 v{VWG}, v{VFL}, v{T0}")
        e(f"v_lshrrev_b32 v{T0}, 7, v{AK}"); e(f"v_lshl_add_u32 v{VWG}, v{T0}, 10, v{VWG}"); e(f"v_add_u32 v{VWG2}, {8192-1024}, v{VWG}")
        e(f"v_lshlrev_b32 v{VFL}, 8, v{AK}")
        e(f"s_lshr_b32 s3, s{sW}, 1"); e("s_lshl_b32 s3, s3, 10"); e(f"s_lshl_b32 s{sFK}, s{sMT}, 13"); e(f"s_add_u32 s{sFK}, s{sFK}, s3")
        k.provide("vwg")
    def vwd():
        k.require("done_U"); lock("T0"); unlock("T0")
        e(f"v_bfe_u32 v{T0}, v{AK}, 8, 1"); e(f"v_lshlrev_b32 v{AWA}, 5, v{T0}")
        e(f"v_bfe_u32 v{T0}, v{AK}, 6, 2"); e(f"v_lshl_add_u32 v{AWA}, v{T0}, 7, v{AWA}")
        e(f"v_and_b32 v{T0}, 0x200, v{AK}"); e(f"v_add_u32 v{AWA}, v{T0}, v{AWA}")
        e(f"v_bfe_u32 v{T0}, v{AK}, 4, 2"); e(f"v_lshl_add_u32 v{AWA}, v{T0}, 3, v{AWA}")
        e(f"v_bfe_u32 v{T0}, v{AK}, 7, 1"); e(f"v_lshl_add_u32 v{AWA}, v{T0}, 6, v{AWA}")
        e(f"v_xor_b32 v{AWB}, 64, v{AWA}")
        e(f"v_add_u32 v{AWA}, s{sWB}, v{AWA}"); e(f"v_add_u32 v{AWB}, s{sWB}, v{AWB}")
        k.provide("vwd")
    at(c.get("t_d2")+0.6, vwg); at(0.5 if NS == 64 else tM+1.5, vwd)
    epoch(25.5, 29.0, kv_landed(4))
    kv_fetch(5, 0, 29.2)
    for i in range(4):
        for q in range(2): at(max(GT-8+1.2*i, 10+1.2*i, 27.2+1.2*i if (NS < 64 and i >= 2 and tM > 19) else 0)+0.4*q, wd_dma(i,q))
    h_flag(2, GT-5.6, GT-4.0)
    for i in range(c["hd"]):
        for mi in range(2): at(GT-3.0+1.0*i+0.4*mi, h_load(i,mi))
    for j in range(4): at(GT-1.4+0.25*j, lambda j=j: d_read(0,j))
    epoch(33.5, 37.0, kv_landed(5))
    kv_fetch(6, 0, 37.2)
    epoch(41.5, 45.0, kv_landed(6))
    tl = GT + (10-c["hd"])*4*(64-GT)/(56-4*ND)
    kv_fetch(7, 0, 45.2)
    epoch(49.5, 53.0, kv_landed(7))
    h_flag(3, tl-2.4, tl-0.9)

    abl0 = len(k.ins)
    k.keep = c.get("keep", 15)
    gi = 0
    ORD = {0:["PV2","QK","PV1"], 1:["PV2","QK","PV1","G"], 2:["PV2","QK","G","PV1","G"], 3:["PV2","QK","G","PV1","G","G"], 4:["PV2","G","QK","G","PV1","G","G"]}
    for t in range(64):
        if t % 8 in c["prio"]:
            curprio[0] = c["prio"][t%8]; e(f"s_setprio {curprio[0]}")
        if t in (tM,GT,40,52): stamp()
        if "tiles" in c and t in range(*c["tiles"]): stamp("tiles")
        S = Sb(t)
        ms = ORD[ng[t]]; n = len(ms); posn = {}
        for x, m in enumerate(ms):
            p = int(round(2 + 16*x/n)) % 16
            if m == "PV1": p = max(p, 10)
            if m == "QK": p = min(p, 5 if n <= 4 else 7)
            posn.setdefault(p, []).append(m)
        for p in range(16):
            now[0] = t + p/16
            for m in posn.get(p, []):
                g_ = gops[gi] if m == "G" else None
                if g_ is not None and hasattr(g_, "pre"): g_.pre()
                elif side and side[0][0] <= now[0] and hasattr(side[0][1], "pre") and not (g_ is not None and gi >= NGU): side[0][1].pre()
                if m == "PV2":
                    if t > 0: PV(t-1, 1)
                    rV(t, 1)
                elif m == "QK":
                    if t < 63: QK(t+1)
                    rK(t+2)
                elif m == "PV1":
                    PV(t, 0); rV(t+1, 0)
                else:
                    g_(); gi += 1
                ns = 1 if (m == "G" and gi > NGU) else 0
                while side and side[0][0] <= now[0] - 0.35*ns:
                    side.pop(0)[1](); ns += 1
            while vside and vside[0][0] <= now[0]:
                vside.pop(0)[1]()
            e(f"v_exp_f32 v{S+p}, v{S+p}")
    assert not vside and gi == len(gops), (side, vside)
    k.keep = 15
    e("s_setprio 3")
    PV(63, 1)
    while side: side.pop(0)[1]()
    abl = c.get("abl", "").split(",")
    if abl != [""]:
        keep = []
        import re as _re
        for ins in k.ins[abl0:]:
            t_ = ins.text
            if "vmwait" in abl and ins.op == "s_waitcnt" and "vmcnt" in t_:
                t2 = _re.sub(r"vmcnt\(\d+\) ?", "", t_).strip()
                if t2 == "s_waitcnt": continue
                ins = Ins(t2)
            if "vmem" in abl and ins.kind == "vmem" and not ("store_dword " in t_): continue
            if "branch" in abl and ins.op.startswith("s_cbranch"): continue
            if "prio" in abl and ins.op == "s_setprio": continue
            if "salu" in abl and ins.kind == "salu" and ins.op.startswith(("s_add","s_and","s_lshl","s_mul","s_lshr")): continue
            if "sig" in abl and ins.kind == "valu" and ins.w and ins.w[0][0] == "v" and GA <= ins.w[0][1] < WB: continue
            keep.append(ins)
        k.ins[abl0:] = keep
        e("s_waitcnt vmcnt(0) lgkmcnt(0)")
    stamp()
    if c["poison"] and c["e_lead"] == 1: flag_store(4)
    lo, hi = (2.0**-40, 2.0**40) if not c["force_fb"] else (2.0**40, 2.0**41)
    e(f"s_mov_b32 s{sT}, {hex(f2u(lo))}"); e(f"s_mov_b32 s{sT2}, {hex(f2u(hi))}")
    e(f"v_mov_b32 v{O+9}, v{O+8}"); e(f"v_permlane32_swap_b32 v{O+8}, v{O+9}")
    e(f"v_cmp_le_f32 s[98:99], s{sT}, v{O+8}")
    e(f"v_cmp_ge_f32 vcc, s{sT2}, v{O+8}"); e(f"s_and_b64 vcc, vcc, s[98:99]")
    e("s_cmp_eq_u64 vcc, -1"); e("s_cbranch_scc0 L_fallback")
    k.raw("L_fb_back:")
    e(f"v_rcp_f32 v{T0}, v{O+8}"); e(f"v_mul_f32 v{T0}, v{T0}, v{VG}")
    for i in range(8): e(f"v_mul_f32 v{O+i}, v{O+i}, v{T0}")
    for i in range(4): e(f"v_cvt_pk_bf16_f32 v{O+i}, v{O+2*i}, v{O+2*i+1}")
    if c["poison"]:
        for i in range(4): e(f"v_min_u32 v{O+i}, -2, v{O+i}")
    k.vm("o", f"buffer_store_dwordx4 {vr(O,4)}, v{AK}, {sr(sWS,4)}, s{sHOS} offen sc1")
    if c["poison"] and c["e_lead"] == 0: flag_store(4)
    e("s_setprio 0")
    worder = [(i,j) for i in range(14,18) for j in range(4)]
    def wo_reads(n):
        for _ in range(n):
            if worder:
                i, j = worder.pop(0); d_read(i, j, vr(GA+8*(i-14)+2*j, 2))
    for i in range(14-ND, 14):
        for j in range(4):
            d_op(i,j)(); wo_reads(1 if i < 13 else 2)
    if not c["poison"]: k.wait(vm=["o"]); flag_store(4)
    wo_reads(16)
    RR = WB
    e(f"v_lshrrev_b32 v0, 8, v{AK}"); e(f"v_and_b32 v{T0}, 0xf0, v{AK}"); e(f"v_lshl_add_u32 v{RR}, v0, 11, v{T0}")
    e(f"s_lshr_b32 s3, s{sW}, 2"); e("s_lshl_b32 s3, s3, 16"); e(f"s_and_b32 s{sT}, s{sW}, 3"); e(f"s_lshl_b32 s{sT}, s{sT}, 13"); e(f"s_add_u32 s3, s3, s{sT}")
    e(f"v_add_u32 v{RR}, s3, v{RR}")
    e(f"v_bfe_u32 v{T0}, v{AK}, 7, 1"); e(f"v_lshl_add_u32 v0, v{T0}, 2, v0"); e(f"v_bfe_u32 v{T0}, v{AK}, 4, 3"); e(f"v_lshlrev_b32 v{T0}, 3, v{T0}")
    e(f"v_lshl_add_u32 v{RR+1}, v0, 10, v{T0}")
    e(f"s_lshl_b32 s{sXO}, s{sMT}, 16"); e(f"s_lshl_b32 s3, s{sW}, 13"); e(f"s_add_u32 s{sXO}, s{sXO}, s3"); e(f"s_lshl_b32 s3, s{sNT}, 7"); e(f"s_add_u32 s{sXO}, s{sXO}, s3")
    e(f"s_mul_i32 s{sHOL}, s{sMT}, {HO_T}"); e(f"s_lshl_b32 s3, s{sW}, 13"); e(f"s_add_u32 s{sHOL}, s{sHOL}, s3"); e(f"s_add_u32 s{sHOL}, s{sHOL}, {WS_HO+112*2048}")
    e(f"s_add_u32 s{sT}, s{sHOL}, 4096")
    e(f"s_lshl_b32 s{sWDO}, s{sW}, 8"); setm0(sWDO, 0)
    k.wait_all(lds=True, vm=False)
    e("s_barrier")
    stamp()
    h_flag(4, None, None)
    stamp()
    OF = SA
    old = lambda i, mi: f"buffer_load_dwordx4 {vr(OF+8*i+4*mi,4)}, v{AK}, {sr(sWS,4)}, s{sHOL if i < 2 else sT} offen offset:{(i&1)*2048+mi*1024} sc1"
    for i in range(4):
        for mi in range(2):
            k.vm(("ol",i), old(i,mi))
    for i in range(4):
        k.wait(vm=[("ol",i)])
        if c["poison"]:
            a_ = OF+8*i
            test = [f"v_max3_u32 v{T0}, v{a_}, v{a_+1}, v{a_+2}", f"v_max3_u32 v{T1}, v{a_+3}, v{a_+4}, v{a_+5}", f"v_max3_u32 v{T0}, v{T0}, v{a_+6}, v{a_+7}",
                    f"v_max_u32 v{T0}, v{T0}, v{T1}", f"v_cmp_eq_u32 vcc, -1, v{T0}"]
            back = k.label("ov_b"); slow = k.label("ov_s")
            for t_ in test: e(t_)
            e(f"s_cbranch_vccnz {slow}"); k.raw(back+":")
            k.ool.append("\n".join([slow+":", f"    s_mov_b32 s{sCNT}, {c['spin']}", slow+"_l:", "    "+old(i,0), "    "+old(i,1), "    s_waitcnt vmcnt(0)"]
                + ["    "+t_ for t_ in test] + ["    s_nop 1", f"    s_cbranch_vccz {back}", f"    s_sub_u32 s{sCNT}, s{sCNT}, 1", f"    s_cmp_lg_u32 s{sCNT}, 0", f"    s_cbranch_scc1 {slow}_l", f"    s_branch {back}"]))
        for j in range(4):
            mi, ni = j>>1, j&1
            acc = ar(64+16*(2*mi+ni),16)
            e(f"v_mfma_f32_32x32x16_bf16 {acc}, {vr(OF+8*i+4*mi,4)}, {vr(GA+8*i+4*ni,4)}, {acc}")
    for r_ in range(64):
        if r_ == 32: setm0(sWDO, 63616); e("s_nop 0")
        k.lds("rw", f"ds_write_addtid_b32 {ar(64+r_)} offset:{r_*2048 if r_ < 32 else (r_-32)*2048+1920}")
    k.wait_all(lds=True, vm=False)
    e("s_barrier")
    stamp()
    RD = 32
    for p in range(8):
        for x in range(2):
            k.lds(("rr",p), f"ds_read_b128 {vr(RD+8*p+4*x,4)}, v{RR} offset:{x*32768+p*256}")
    for p in range(1,8):
        k.wait(lds=[("rr",p)])
        for i in range(4): e(f"v_pk_add_f32 {vr(RD+2*i,2)}, {vr(RD+2*i,2)}, {vr(RD+8*p+2*i,2)}")
    for i in range(4): e(f"v_cvt_pk_bf16_f32 v{RD+i}, v{RD+2*i}, v{RD+2*i+1}")
    for x in range(2):
        k.vm("out", f"buffer_store_dwordx2 {vr(RD+2*x,2)}, v{RR+1}, {sr(sOUT,4)}, s{sXO} offen offset:{64*x} {c['outmod']}")
    if "diag_pad" in c: k.wait_all(); stamp("end")
    if c["stamps"]:
        k.wait_all(); stamp("end")
        e("s_memrealtime s[98:99]"); e("s_waitcnt lgkmcnt(0)")
        e(f"s_lshl_b32 s3, s2, 3"); e(f"s_add_u32 s3, s3, s{sW}"); e("s_lshl_b32 s3, s3, 7"); e(f"s_add_u32 s3, s3, {WS_ST}")
        vals = ["s100","s98","s101"] + [f"s{sST+i}" for i in range(nst[0])]
        for i, v in enumerate(vals):
            e(f"v_mov_b32 v{T0}, {v}"); e(f"buffer_store_dword v{T0}, off, {sr(sWS,4)}, s3 offset:{4*i}")
    k.raw("L_end:")
    e("s_endpgm")
    f = K(); g = f.e
    f.raw("L_fallback:")
    g("s_waitcnt vmcnt(0) lgkmcnt(0)")
    MX = T0; CN = SB
    g(f"v_mov_b32 v{MX}, 0xff800000"); g(f"s_lshl_b32 s{sT2}, s{sH}, 17"); g(f"s_add_u32 s{sT2}, s{sT2}, {WS_KV}"); g(f"s_mov_b32 s{sCNT}, 64")
    f.raw("L_fb1:")
    g(f"buffer_load_dwordx4 {vr(KF,4)}, v{AK}, {sr(sWS,4)}, s{sT2} offen sc1"); g("s_waitcnt vmcnt(0)")
    g(f"v_mfma_f32_32x32x16_bf16 {vr(SA,16)}, {vr(KF,4)}, {vr(Q,4)}, 0")
    for i in range(8): g(f"v_max3_f32 v{MX}, v{MX}, v{SA+2*i}, v{SA+2*i+1}")
    g(f"s_add_u32 s{sT2}, s{sT2}, 2048"); g(f"s_sub_u32 s{sCNT}, s{sCNT}, 1"); g(f"s_cmp_lg_u32 s{sCNT}, 0"); g("s_cbranch_scc1 L_fb1")
    g(f"v_mov_b32 v{T1}, v{MX}"); g(f"v_permlane32_swap_b32 v{MX}, v{T1}"); g(f"v_max_f32 v{MX}, v{MX}, v{T1}")
    for i in range(16): g(f"v_sub_f32 v{CN+i}, 0, v{MX}")
    for i in range(16): g(f"v_mov_b32 v{O+i}, 0")
    for i in range(8): g(f"v_mov_b32 v{VF+i}, 0x3f803f80")
    g(f"s_lshl_b32 s{sT2}, s{sH}, 17"); g(f"s_add_u32 s{sT2}, s{sT2}, {WS_KV}"); g(f"s_mov_b32 s{sCNT}, 64")
    f.raw("L_fb2:")
    g(f"buffer_load_dwordx4 {vr(KF,4)}, v{AK}, {sr(sWS,4)}, s{sT2} offen sc1")
    g("s_mov_b32 exec_lo, 0xffff"); g("s_mov_b32 exec_hi, 0xffff")
    g(f"buffer_load_dwordx4 {vr(VF,4)}, v{AV0}, {sr(sWS,4)}, s{sT2} offen sc1")
    g(f"buffer_load_dwordx4 {vr(VF+4,4)}, v{AV1}, {sr(sWS,4)}, s{sT2} offen sc1")
    g("s_mov_b64 exec, -1"); g("s_waitcnt vmcnt(0)")
    g(f"v_mfma_f32_32x32x16_bf16 {vr(SA,16)}, {vr(KF,4)}, {vr(Q,4)}, {vr(CN,16)}")
    for i in range(16): g(f"v_exp_f32 v{SA+i}, v{SA+i}")
    g(f"v_smfmac_f32_32x32x32_bf16 {vr(O,16)}, {vr(VF,4)}, {vr(SA,8)}, v{IDX}")
    g(f"v_smfmac_f32_32x32x32_bf16 {vr(O,16)}, {vr(VF+4,4)}, {vr(SA+8,8)}, v{IDX}")
    g(f"s_add_u32 s{sT2}, s{sT2}, 2048"); g(f"s_sub_u32 s{sCNT}, s{sCNT}, 1"); g(f"s_cmp_lg_u32 s{sCNT}, 0"); g("s_cbranch_scc1 L_fb2")
    g("s_nop 15"); g("s_branch L_fb_back")

    hdr = open("cdna_kernels/%s.s.ref" % NAME).read().split("; Override launch geometry")[0]
    out = hdr + f"; @launch grid=(256,1,1) block=(512,1,1) lds={LDS_BYTES}\n"
    out += f""".amdgcn_target "amdgcn-amd-amdhsa--gfx950"
.text
.globl {NAME}_kernel
.p2align 8
.type {NAME}_kernel,@function
{NAME}_kernel:
"""
    out += k.text() + "\n" + "\n".join(var_text) + "\n" + kv_.text() + "\n" + "\n".join(k.ool) + "\n" + f.text() + f"""
L_code_end:
; unreachable filler so that the 40 KiB instruction prefetch window stays inside the section
; CODE_SIZE_CHECK
.fill (41472 - (L_code_end - {NAME}_kernel)) / 4, 4, 0xbf810000
.section .rodata,"a"
.p2align 6
.amdhsa_kernel {NAME}_kernel
  .amdhsa_next_free_vgpr 256
  .amdhsa_next_free_sgpr 102
  .amdhsa_accum_offset 256
  .amdhsa_group_segment_fixed_size 0
  .amdhsa_kernarg_size 88
  .amdhsa_user_sgpr_count 2
  .amdhsa_user_sgpr_kernarg_segment_ptr 1
  .amdhsa_system_sgpr_workgroup_id_x 1
.end_amdhsa_kernel
"""
    sys.stderr.write(f"instrs {len(k.ins)} nops {k.nops} ng {''.join(map(str,ng))}\n")
    return out

if __name__ == "__main__":
    import json
    cfg = json.loads(sys.argv[2]) if len(sys.argv) > 2 else {}
    if "prio" in cfg: cfg["prio"] = {int(a): b for a, b in cfg["prio"].items()}
    open(sys.argv[1], "w").write(gen(cfg))
```
